```python
import torch

def _softmax(x, axis=-1):
    return torch.softmax(x, dim=axis)
def _gelu(x):
    return torch.nn.functional.gelu(x, approximate="tanh")
def _silu(x):
    return torch.nn.functional.silu(x)
def _sigmoid(x):
    return torch.sigmoid(x)
def _layernorm(x, axis=-1, eps=1e-5):
    m = x.mean(dim=axis, keepdim=True)
    v = x.var(dim=axis, keepdim=True, unbiased=False)
    return (x - m) / torch.sqrt(v + eps)
def _scatter_add(tgt, idx, src, axis=0):
    return tgt.clone().index_add_(axis, idx, src)
def _segment_sum(src, seg, n):
    out = torch.zeros((n,) + src.shape[1:], dtype=src.dtype)
    return out.index_add_(0, seg, src)
def _pad(x, pw):
    flat = tuple(v for pair in reversed(pw) for v in pair)
    return torch.nn.functional.pad(x, flat)

kernel_name = 'concat_heads__softmax_full_mha__ssm_conv_s4__prompt'

def setup_inputs():

    _w = (lambda a: (lambda t: t.to(torch.bfloat16) if t.is_floating_point() else t)(torch.as_tensor(a)))
    def _A_setup():
        B, S, D = 1, 2048, 512
        return {
            "x": _w((lambda *s: torch.randn(*s, dtype=torch.bfloat16) * 0.2)(B, S, D)),
            "wqkv": _w((lambda *s: torch.randn(*s, dtype=torch.bfloat16) * 0.2)(D, 3 * D)),
            "wo": _w((lambda *s: torch.randn(*s, dtype=torch.bfloat16) * 0.05)(D, D)),
        }
    _A_in = _A_setup()

    def _B_setup():
        B, L, D, N = 1, 2048, 512, 128
        A_re = -(lambda _x: torch.exp(torch.as_tensor(_x)))((lambda *s: torch.randn(*s, dtype=torch.bfloat16) * 6.4)(D, N))
        A_im = torch.pi * (lambda *s: torch.randn(*s, dtype=torch.bfloat16) * 0.1)(D, N)
        B_re = (lambda *s: torch.randn(*s, dtype=torch.bfloat16) * 0.2)(D, N)
        B_im = (lambda *s: torch.randn(*s, dtype=torch.bfloat16) * 0.2)(D, N)
        C_re = (lambda *s: torch.randn(*s, dtype=torch.bfloat16) * 0.2)(D, N)
        C_im = (lambda *s: torch.randn(*s, dtype=torch.bfloat16) * 0.2)(D, N)
        log_dt = (lambda *s: torch.randn(*s, dtype=torch.bfloat16) * 0.1)(D) * 0.5 - 4.0
        Dskip = (lambda *s: torch.randn(*s, dtype=torch.bfloat16) * 0.1)(D)
        return {
            "u": _w((lambda *s: torch.randn(*s, dtype=torch.bfloat16) * 0.05)(B, L, D)),
            "A_re": _w(A_re),
            "A_im": _w(A_im),
            "B_re": _w(B_re),
            "B_im": _w(B_im),
            "C_re": _w(C_re),
            "C_im": _w(C_im),
            "log_dt": _w(log_dt),
            "Dskip": _w(Dskip),
        }
    _B_in = _B_setup()

    return {
        "A_x": _A_in["x"],
        "A_wqkv": _A_in["wqkv"],
        "A_wo": _A_in["wo"],
        "B_u": _B_in["u"],
        "B_A_re": _B_in["A_re"],
        "B_A_im": _B_in["A_im"],
        "B_B_re": _B_in["B_re"],
        "B_B_im": _B_in["B_im"],
        "B_C_re": _B_in["C_re"],
        "B_C_im": _B_in["C_im"],
        "B_log_dt": _B_in["log_dt"],
        "B_Dskip": _B_in["Dskip"],
    }

def reference(A_x, A_wqkv, A_wo, B_u, B_A_re, B_A_im, B_B_re, B_B_im, B_C_re, B_C_im, B_log_dt, B_Dskip):
    def _A_ref(x, wqkv, wo):
        B, S, D = x.shape
        H = 32; Dh = D // H
        qkv = (lambda x, *d: x.permute(*d))((x @ wqkv).reshape(B, S, 3, H, Dh), 2, 0, 3, 1, 4)
        q, k, v = qkv[0], qkv[1], qkv[2]
        scale = Dh ** -0.5
        scores = torch.einsum("bhqd,bhkd->bhqk", q, k) * scale
        p = _softmax(scores, axis=-1)
        o = torch.einsum("bhqk,bhkd->bhqd", p, v)
        return (lambda x, *d: x.permute(*d))(o, 0, 2, 1, 3).reshape(B, S, D) @ wo

    def _B_ref(u, A_re, A_im, B_re, B_im, C_re, C_im, log_dt, Dskip):
        Bsz, L, D = u.shape
        dt = torch.exp(log_dt)[:, None]
        A = A_re + 1j * A_im
        Bc = B_re + 1j * B_im
        Cc = C_re + 1j * C_im
        logdA = dt * A
        dB = dt * Bc
        l = (lambda x, dt: x.to(dt))(torch.arange(L), A_re.dtype)
        P = torch.exp(logdA[:, :, None] * l[None, None, :])
        K = torch.einsum("dn,dnl,dn->dl", Cc, P, dB).real
        L2 = 2 * L
        Kp = _pad(K, ((0, 0), (0, L)))
        up = (lambda x, *d: x.permute(*d))(u, 0, 2, 1)
        up = _pad(up, ((0, 0), (0, 0), (0, L)))
        Kf = (lambda x, axes=(-2,-1): torch.fft.rfft2(x.float(), dim=axes))(Kp[:, None, :], axes=(-2, -1))
        Uf = (lambda x, axes=(-2,-1): torch.fft.rfft2(x.float(), dim=axes))(up[:, :, None, :], axes=(-2, -1))
        Yf = Uf * Kf[None, :, :, :]
        y = (lambda x, s, axes=(-2,-1): torch.fft.irfft2(x, s=s, dim=axes).to(torch.bfloat16))(Yf, (1, L2), axes=(-2, -1))[:, :, 0, :L]
        y = (lambda x, *d: x.permute(*d))(y, 0, 2, 1) + u * Dskip[None, None, :]
        return y

    a = _A_ref(A_x, A_wqkv, A_wo)
    b = _B_ref(B_u, B_A_re, B_A_im, B_B_re, B_B_im, B_C_re, B_C_im, B_log_dt, B_Dskip)
    return torch.concatenate([a, b], axis=-1)
```

```python
import re

class A:
    def __init__(self):
        self.lines = []
    def __call__(self, s):
        for l in s.split("\n"):
            l = l.strip()
            if l: self.lines.append(l)
    def label(self, name):
        self.lines.append(name + ":")
    def nop(self, n):
        while n > 0:
            k = min(n, 16)
            self.lines.append(f"s_nop {k-1}")
            n -= k
    def text(self):
        out = []
        for l in self.lines:
            if l.endswith(":") or l.startswith("."): out.append(l)
            else: out.append("  " + l)
        return "\n".join(out) + "\n"

def vr(b, n=1):
    return f"v{b}" if n == 1 else f"v[{b}:{b+n-1}]"
def sr(b, n=1):
    return f"s{b}" if n == 1 else f"s[{b}:{b+n-1}]"

_reg = re.compile(r"\b([vsa])(?:(\d+)|\[(\d+):(\d+)\])")
def regs(op):
    out = []
    for m in _reg.finditer(op):
        k = m.group(1)
        if m.group(2) is not None: out.append((k, int(m.group(2))))
        else: out += [(k, i) for i in range(int(m.group(3)), int(m.group(4)) + 1)]
    for nm in ("vcc", "exec", "m0"):
        if re.search(r"\b" + nm + r"(_lo|_hi)?\b", op): out.append((nm, 0))
    return out

TRANS = ("v_exp_f32", "v_log_f32", "v_rcp_f32", "v_rsq_f32", "v_sqrt_f32", "v_sin_f32", "v_cos_f32")
def parse(line):
    line = line.split(";")[0].strip()
    if not line or line.endswith(":") or line.startswith("."): return None
    p = line.split(None, 1)
    mn = p[0]; rest = p[1] if len(p) > 1 else ""
    ops = [o.strip() for o in re.split(r",(?![^\[]*\])", rest)]
    d = dict(mn=mn, line=line, w=[], r=[], kind="other", states=1)
    if mn == "s_nop": d["states"] = int(ops[0], 0) + 1; return d
    if mn.startswith("v_mfma") or mn.startswith("v_smfmac"):
        d["kind"] = "mfma"; d["passes"] = 8 if "32x32" in mn else 4
        d["w"] = regs(ops[0]); d["a"] = regs(ops[1]); d["b"] = regs(ops[2])
        if mn.startswith("v_smfmac"): d["c"] = regs(ops[0]); d["b"] = d["b"] + regs(ops[3].split()[0])
        else: d["c"] = regs(ops[3].split()[0])
        d["r"] = d["a"] + d["b"] + d["c"]
        return d
    if mn.startswith("v_"):
        d["kind"] = "valu"
        d["trans"] = any(mn.startswith(t) for t in TRANS)
        if mn.startswith("v_cmp"):
            d["w"] = regs(ops[0]); d["r"] = sum((regs(o) for o in ops[1:]), [])
        elif mn.startswith("v_permlane") and "swap" in mn:
            d["w"] = regs(ops[0]) + regs(ops[1]); d["r"] = list(d["w"]); d["perm"] = True
        elif mn.startswith("v_readfirstlane") or mn.startswith("v_readlane"):
            d["w"] = regs(ops[0]); d["r"] = sum((regs(o) for o in ops[1:]), []); d["rl"] = True
        else:
            d["w"] = regs(ops[0]); d["r"] = sum((regs(o) for o in ops[1:]), [])
            if mn.startswith("v_fmac") or mn.startswith("v_dot2c") or "UNUSED_PRESERVE" in line: d["r"] += d["w"]
            if "_co_" in mn: d["w"] += regs(ops[1])
            if mn.startswith("v_cndmask") and len(ops) == 3: d["r"].append(("vcc", 0))
        if "dpp" in mn or "row_" in line or "quad_perm" in line: d["dpp"] = True
        if "sdwa" in mn and "dst_sel:DWORD" not in line and "dst_sel" in line: d["opsel"] = True
        return d
    if mn.startswith("ds_"):
        d["kind"] = "ds"
        if mn.startswith("ds_read") or "_rtn" in mn or mn.startswith("ds_bperm") or mn.startswith("ds_swz") or mn.startswith("ds_swizzle"):
            d["w"] = regs(ops[0]); d["r"] = sum((regs(o.split()[0]) for o in ops[1:]), [])
            if "d16" in mn: d["r"] += d["w"]
        else:
            d["r"] = sum((regs(o.split()[0]) for o in ops), [])
        return d
    if mn.startswith("buffer_") or mn.startswith("global_"):
        d["kind"] = "vmem"
        islds = bool(re.search(r"\blds\b", line)) or "_lds_" in mn
        allr = sum((regs(o.split()[0]) if o else [] for o in ops), [])
        if "load" in mn and not islds:
            d["w"] = regs(ops[0]); d["r"] = sum((regs(o.split()[0]) for o in ops[1:]), [])
        else:
            d["r"] = allr
            if islds: d["r"].append(("m0", 0)); d["ldsdma"] = True
            if "store" in mn and ("x4" in mn or "x3" in mn):
                d["wide"] = regs(ops[0]) if mn.startswith("buffer_") else regs(ops[1])
        return d
    if mn.startswith("s_"):
        d["kind"] = "salu"
        if mn.startswith(("s_cmp", "s_cbranch", "s_branch", "s_waitcnt", "s_barrier", "s_endpgm", "s_setprio", "s_sleep")):
            d["r"] = sum((regs(o) for o in ops), [])
        else:
            d["w"] = regs(ops[0]); d["r"] = sum((regs(o) for o in ops[1:]), [])
        return d
    return d

def check(lines, name=""):
    ins = [p for p in (parse(l) for l in lines) if p]
    probs = []
    for i, c in enumerate(ins):
        dist = 0
        for j in range(i - 1, max(-1, i - 40), -1):
            p = ins[j]
            need = 0
            pw = set(p["w"]); cr = set(c["r"]); cw = set(c["w"])
            vw = {x for x in pw if x[0] in "va"}
            if p["kind"] == "valu":
                if c["kind"] == "mfma" and vw & cr: need = max(need, 2)
                if p.get("trans") and c["kind"] == "valu" and not c.get("trans") and vw & cr: need = max(need, 1)
                if p.get("trans") and c["kind"] in ("ds", "vmem") and vw & cr: need = max(need, 1)
                if c.get("perm") and vw & cr: need = max(need, 2)
                if c.get("dpp") and vw & cr: need = max(need, 2)
                if c.get("rl") and vw & cr: need = max(need, 1)
                if p.get("opsel") and c["kind"] == "valu" and vw & (cr | cw): need = max(need, 1)
                sw = {x for x in pw if x[0] in ("s", "vcc")}
                if sw & cr:
                    if c["kind"] == "valu": need = max(need, 2)
                    if c["kind"] == "vmem": need = max(need, 5)
                    if c["kind"] == "salu": need = max(need, 1)
                if ("exec", 0) in pw and c["kind"] in ("mfma",): need = max(need, 4)
            if p["kind"] == "mfma":
                n = {4: 8, 8: 12}[p["passes"]]
                if c["kind"] == "mfma":
                    if pw & (set(c["a"]) | set(c["b"])): need = max(need, n)
                    if pw & set(c["c"]) and not (p["w"] == c["c"] and p["passes"] == c["passes"]): need = max(need, n - 2)
                elif c["kind"] in ("valu", "ds", "vmem") and pw & (cr | cw): need = max(need, n)
                if c["kind"] == "valu" and set(p["c"]) & cw: need = max(need, {4: 3, 8: 7}[p["passes"]])
            if p["kind"] == "salu" and ("m0", 0) in pw and c.get("ldsdma"): need = max(need, 1)
            if p.get("wide") and set(p["wide"]) & cw: need = max(need, 2)
            if need > dist:
                probs.append(f"{name}: need {need} have {dist}: [{p['line']}] -> [{c['line']}]")
            dist += p["states"]
            if dist > 24: break
    return probs
```

```python
from asm import A, vr, sr, check
import struct
MB = 1 << 20
QF, KF, VF, OF, UT, YT, KR = 0, 2*MB, 4*MB, 6*MB, 8*MB, 10*MB, 12*MB
KRS = 4160
WS_USED = 15 * MB
def f32(x):
    return "0x%08x" % struct.unpack("<I", struct.pack("<f", x))[0]
LOG2E = 1.4426950408889634
def srd(a, d, base, nbytes):
    a(f"s_mov_b32 s{d}, s{base}")
    a(f"s_mov_b32 s{d+1}, s{base+1}")
    a(f"s_mov_b32 s{d+2}, {nbytes}")
    a(f"s_mov_b32 s{d+3}, 0x20000")
def kd(name, vgpr, sgpr=96):
    acc = (vgpr + 3) // 4 * 4
    return f""".amdhsa_kernel {name}
  .amdhsa_next_free_vgpr {vgpr}
  .amdhsa_next_free_sgpr {sgpr}
  .amdhsa_accum_offset {acc}
  .amdhsa_group_segment_fixed_size 0
  .amdhsa_kernarg_size 120
  .amdhsa_user_sgpr_count 2
  .amdhsa_user_sgpr_kernarg_segment_ptr 1
  .amdhsa_system_sgpr_workgroup_id_x 1
.end_amdhsa_kernel
"""
def head(a, name):
    a(f".globl {name}")
    a(".p2align 8")
    a(f".type {name},@function")
    a.label(name)
```

```python
from common import *
NAME = "qkv_kgen_kernel"
WB = 0
XB = 96 * 1024
AB = 144 * 1024
FL = 156 * 1024
LDS = FL + 64
VG = 128

def gen():
    a = A()
    head(a, NAME)
    a("s_cmp_ge_u32 s2, 256")
    a("s_cbranch_scc1 L1_end")
    a("s_load_dwordx4 s[4:7], s[0:1], 0")
    a("s_load_dwordx2 s[8:9], s[0:1], 24")
    a("s_load_dwordx2 s[10:11], s[0:1], 112")
    a("s_load_dwordx16 s[16:31], s[0:1], 32")
    a("v_lshrrev_b32 v2, 6, v0")
    a("v_and_b32 v1, 63, v0")
    a("v_readfirstlane_b32 s3, v2")
    a("s_nop 1")
    a("s_cmp_ge_u32 s3, 4")
    a("s_cbranch_scc1 L1_aux")
    gemm(a)
    a("s_endpgm")
    a.label("L1_aux")
    aux(a)
    a.label("L1_end")
    a("s_endpgm")
    return a

def gemm(a):
    a("s_and_b32 s52, s2, 3")
    a("s_lshl_b32 s52, s52, 2")
    a("s_bfe_u32 s53, s2, 0x20003")
    a("s_add_u32 s52, s52, s53")
    a("s_bfe_u32 s54, s2, 0x10002")
    a("s_lshl_b32 s54, s54, 3")
    a("s_lshr_b32 s55, s2, 5")
    a("s_add_u32 s54, s54, s55")
    a("s_lshl_b32 s53, s53, 1")
    a("s_add_u32 s53, s53, s55")
    a("s_and_b32 s53, s53, 7")
    a("v_lshrrev_b32 v3, 3, v1")
    a("v_and_b32 v4, 3, v3")
    a("v_lshrrev_b32 v5, 5, v1")
    a("v_lshl_add_u32 v4, v5, 3, v4")
    a("v_lshlrev_b32 v4, 10, v4")
    a("v_lshrrev_b32 v5, 4, v1")
    a("v_and_b32 v6, 7, v1")
    a("v_xor_b32 v5, v5, v6")
    a("v_lshl_add_u32 v8, v5, 4, v4")
    a("v_xor_b32 v5, 4, v5")
    a("v_lshl_add_u32 v9, v5, 4, v4")
    a("v_add_u32 v9, 4096, v9")
    a("v_lshrrev_b32 v3, 2, v1")
    a("v_mul_u32_u24 v3, 3072, v3")
    a("v_and_b32 v4, 3, v1")
    a("v_lshl_add_u32 v10, v4, 4, v3")
    a("s_waitcnt lgkmcnt(0)")
    srd(a, 32, 4, 2048 * 1024)
    srd(a, 36, 6, 512 * 3072)
    srd(a, 40, 10, WS_USED)
    a("s_lshl_b32 s56, s52, 2")
    a("s_add_u32 s56, s56, s3")
    a("s_lshl_b32 s57, s56, 15")
    a("s_lshl_b32 s58, s54, 6")
    a(f"s_mul_i32 s59, s3, {16*3072}")
    a("s_add_u32 s58, s58, s59")
    a(f"s_mul_i32 s60, s3, {3*4096}")
    a(f"s_add_u32 s60, s60, {XB}")
    a(f"s_mul_i32 s61, s3, {3*1024}")

    def chunk_regs(j):
        a(f"s_add_u32 s62, s53, {j}")
        a("s_and_b32 s62, s62, 7")
    def dma_x(j):
        chunk_regs(j)
        a("s_lshl_b32 s63, s62, 7")
        a("s_add_u32 s63, s63, s57")
        a("s_add_u32 s64, s63, 16384")
        for q in range(4):
            a(f"s_add_u32 m0, s60, {(j % 3) * 4096 + q * 1024}")
            a("s_nop 0")
            a(f"buffer_load_dwordx4 v{8 + (q & 1)}, s[32:35], s{63 + (q >> 1)} offen lds")
    def dma_w(j):
        chunk_regs(j)
        a(f"s_mul_i32 s63, s62, {64*3072}")
        a("s_add_u32 s63, s63, s58")
        for seg in range(3):
            a(f"s_add_u32 m0, s61, {WB + j * 12288 + seg * 1024}")
            if seg: a(f"s_add_u32 s63, s63, 1024")
            else: a("s_nop 0")
            a(f"buffer_load_dwordx4 v10, s[36:39], s63 offen lds")
    for j in range(3):
        dma_x(j); dma_w(j)
    for j in range(3, 8):
        dma_w(j)
    a("v_and_b32 v3, 31, v1")
    a("v_lshrrev_b32 v4, 5, v1")
    a("v_bfe_u32 v5, v1, 1, 3")
    a("v_xor_b32 v5, v5, v4")
    a("v_lshlrev_b32 v3, 7, v3")
    a("v_add_u32 v3, s60, v3")
    for s in range(4):
        a(f"v_xor_b32 v6, {2*s}, v5")
        a(f"v_lshl_add_u32 v{12+s}, v6, 4, v3")
    a("v_lshlrev_b32 v3, 9, v4")
    a("v_bfe_u32 v5, v1, 2, 2")
    a("v_lshl_add_u32 v3, v5, 6, v3")
    a("v_bfe_u32 v5, v1, 4, 1")
    a("v_lshl_add_u32 v3, v5, 5, v3")
    a("v_and_b32 v5, 3, v1")
    a("v_lshl_add_u32 v11, v5, 3, v3")
    a(f"v_add_u32 v7, {48*1024}, v11")
    for i in range(48):
        a(f"v_mov_b32 v{64+i}, 0")
    def reads(n):
        b = 16 + 16 * (n & 1)
        j = n >> 2
        a(f"ds_read_b128 {vr(b,4)}, v{12 + (n & 3)} offset:{(j % 3) * 4096}")
        base = 11 if n < 16 else 7
        for seg in range(3):
            off = WB + ((n & 15) * 3 + seg) * 1024
            a(f"ds_read_b64_tr_b16 {vr(b+4+4*seg,2)}, v{base} offset:{off}")
            a(f"ds_read_b64_tr_b16 {vr(b+6+4*seg,2)}, v{base} offset:{off+256}")
    waits = {0: 29, 1: 22, 2: 19, 3: 4, 4: 4, 5: 4, 6: 4, 7: 0}
    def sync(c):
        a(f"s_waitcnt vmcnt({waits[c]})")
        if c <= 3: a("s_barrier")
    sync(0)
    reads(0)
    for n in range(32):
        if n + 1 < 32:
            if (n + 1) % 4 == 0: sync((n + 1) // 4)
            reads(n + 1)
            a("s_waitcnt lgkmcnt(7)")
        else:
            a("s_waitcnt lgkmcnt(0)")
        b = 16 + 16 * (n & 1)
        a(f"v_mfma_f32_32x32x16_bf16 v[64:79], {vr(b+4,4)}, {vr(b,4)}, v[64:79]")
        a(f"v_mfma_f32_32x32x16_bf16 v[80:95], {vr(b+8,4)}, {vr(b,4)}, v[80:95]")
        a(f"v_mfma_f32_32x32x16_bf16 v[96:111], {vr(b,4)}, {vr(b+12,4)}, v[96:111]")
        if n % 4 == 3 and n // 4 + 3 < 8:
            dma_x(n // 4 + 3)
    a("v_and_b32 v3, 3, v1")
    a("v_bfe_u32 v4, v1, 3, 1")
    a("v_lshl_add_u32 v3, v4, 2, v3")
    a("v_bfe_u32 v4, v1, 2, 1")
    a("v_lshl_add_u32 v3, v4, 3, v3")
    a("v_and_b32 v4, 48, v1")
    a("v_add_u32 v3, v3, v4")
    a("v_lshlrev_b32 v3, 4, v3")
    a("v_bfe_u32 v4, v1, 4, 1")
    a("v_lshlrev_b32 v4, 16, v4")
    a("v_lshrrev_b32 v5, 5, v1")
    a("v_lshl_add_u32 v4, v5, 8, v4")
    a("v_and_b32 v5, 15, v1")
    a("v_lshl_add_u32 v4, v5, 4, v4")
    a("s_lshl_b32 s62, s54, 17")
    a("s_lshl_b32 s63, s56, 10")
    a("s_add_u32 s62, s62, s63")
    a("s_add_u32 s63, s62, 65536")
    a(f"s_add_u32 s64, s62, {KF}")
    a(f"s_add_u32 s65, s63, {KF}")
    a(f"s_add_u32 s66, s62, {VF}")
    a(f"s_mov_b32 s67, {f32(0.25 * LOG2E)}")
    for i in range(16):
        a(f"v_mul_f32 v{64+i}, s67, v{64+i}")
    for t in range(3):
        for i in range(8):
            a(f"v_cvt_pk_bf16_f32 v{16+8*t+i}, v{64+16*t+2*i}, v{65+16*t+2*i}")
    a("buffer_store_dwordx4 v[16:19], v3, s[40:43], s62 offen")
    a("buffer_store_dwordx4 v[20:23], v3, s[40:43], s63 offen")
    a("buffer_store_dwordx4 v[24:27], v3, s[40:43], s64 offen")
    a("buffer_store_dwordx4 v[28:31], v3, s[40:43], s65 offen")
    a("buffer_store_dwordx4 v[32:35], v4, s[40:43], s66 offen")
    a("buffer_store_dwordx4 v[36:39], v4, s[40:43], s66 offen offset:512")

def aux(a):
    a("s_sub_u32 s3, s3, 4")
    a("s_lshr_b32 s52, s3, 1")
    a("s_lshl_b32 s53, s2, 1")
    a("s_add_u32 s52, s52, s53")
    a("s_and_b32 s53, s3, 1")
    a(f"s_mul_i32 s54, s3, 3072")
    a(f"s_add_u32 s54, s54, {AB}")
    a("s_lshl_b32 s55, s52, 8")
    a("s_lshl_b32 s56, s53, 7")
    a("s_add_u32 s55, s55, s56")
    a("v_lshl_add_u32 v3, v1, 1, s55")
    a("s_lshl_b32 s56, s52, 1")
    a("v_mov_b32 v4, s56")
    a("v_lshrrev_b32 v5, 2, v1")
    a("v_lshlrev_b32 v5, 10, v5")
    a("v_and_b32 v6, 3, v1")
    a("v_lshl_add_u32 v5, v6, 4, v5")
    a("s_lshr_b32 s57, s2, 3")
    a("s_lshl_b32 s57, s57, 1")
    a("s_lshr_b32 s58, s3, 1")
    a("s_add_u32 s57, s57, s58")
    a("s_and_b32 s58, s2, 7")
    a("s_lshl_b32 s58, s58, 1")
    a("s_add_u32 s58, s58, s53")
    a("s_lshl_b32 s59, s57, 15")
    a("s_lshl_b32 s60, s58, 6")
    a("s_add_u32 s59, s59, s60")
    a("s_add_u32 s60, s59, 16384")
    a("s_waitcnt lgkmcnt(0)")
    for i in range(6):
        a(f"global_load_ushort v{8+i}, v3, s[{16+2*i}:{17+2*i}]")
    a("global_load_ushort v14, v4, s[28:29]")
    srd(a, 44, 8, 2048 * 1024)
    srd(a, 40, 10, WS_USED)
    a("s_mov_b32 m0, s54")
    a("s_nop 0")
    a("buffer_load_dwordx4 v5, s[44:47], s59 offen lds")
    a("s_add_u32 m0, s54, 1024")
    a("s_nop 0")
    a("buffer_load_dwordx4 v5, s[44:47], s60 offen lds")
    a("v_mov_b32 v15, 0")
    a("s_lshl_b32 s61, s3, 2")
    a(f"s_add_u32 s61, s61, {FL}")
    a("v_mov_b32 v16, s61")
    a("ds_write_b32 v16, v15")
    a("s_and_b32 s62, s3, 2")
    a("s_mul_i32 s62, s62, 3072")
    a(f"s_add_u32 s62, s62, {AB}")
    a("s_lshl_b32 s63, s53, 10")
    a("s_sub_u32 s63, 2047, s63")
    for o in range(2):
        a(f"v_lshlrev_b32 v17, 3, v1")
        a(f"v_sub_u32 v17, s63, v17")
        if o: a("v_subrev_u32 v17, 512, v17")
        a("v_or_b32 v18, 128, v17")
        a("v_ffbh_u32 v18, v18")
        a("v_sub_u32 v18, 24, v18")
        a("v_min_u32 v19, 1, v18")
        a("v_lshlrev_b32 v20, v18, 1")
        a("v_lshrrev_b32 v20, 1, v20")
        a("v_sub_u32 v20, v20, v19")
        a("v_lshlrev_b32 v21, 9, v18")
        a("v_add_u32 v21, s62, v21")
        for k in range(8):
            a(f"v_subrev_u32 v22, {k}, v17")
            a("v_bfe_u32 v23, v22, v18, v19")
            a("v_add3_u32 v22, v22, v23, v20")
            a("v_lshrrev_b32 v22, v18, v22")
            a(f"v_lshl_add_u32 v{96+8*o+k}, v22, 2, v21")
    a("v_and_b32 v17, 15, v1")
    a("v_and_b32 v18, 7, v17")
    a("v_lshrrev_b32 v19, 3, v17")
    a("v_lshl_add_u32 v18, v19, 7, v18")
    a("v_cvt_f32_u32 v112, v18")
    a("v_and_b32 v18, 3, v17")
    a("v_lshlrev_b32 v18, 1, v18")
    a("v_bfe_u32 v20, v17, 2, 1")
    a("v_lshl_add_u32 v18, v20, 7, v18")
    a("v_add_u32 v18, 256, v18")
    a("v_and_b32 v20, 1, v17")
    a("v_lshlrev_b32 v20, 2, v20")
    a("v_bfe_u32 v21, v17, 1, 2")
    a("v_lshl_add_u32 v20, v21, 7, v20")
    a("v_add_u32 v20, 512, v20")
    a("v_cmp_gt_u32 vcc, 8, v17")
    a("s_nop 1")
    a("v_cndmask_b32 v18, v20, v18, vcc")
    a("v_cvt_f32_u32 v114, v18")
    a("v_lshlrev_b32 v18, 7, v17")
    a("v_add_u32 v18, 1024, v18")
    a("v_cvt_f32_u32 v116, v18")
    a("v_lshlrev_b32 v18, 3, v17")
    a("v_cvt_f32_u32 v118, v18")
    a("v_lshrrev_b32 v19, 4, v1")
    a("v_and_b32 v20, 1, v19")
    a("v_lshrrev_b32 v21, 1, v19")
    a("v_lshlrev_b32 v22, 5, v17")
    a("v_lshl_add_u32 v22, v20, 4, v22")
    a("v_lshl_add_u32 v22, v21, 9, v22")
    a("v_add_u32 v120, s54, v22")
    a("v_lshlrev_b32 v22, 4, v17")
    a("v_lshl_add_u32 v22, v20, 8, v22")
    a("v_add_u32 v22, 1024, v22")
    a("v_lshlrev_b32 v23, 3, v17")
    a("v_lshl_add_u32 v23, v20, 8, v23")
    a("v_add_u32 v23, 1536, v23")
    a("v_cmp_gt_u32 vcc, 2, v19")
    a("v_mov_b32 v24, 128")
    a("s_nop 0")
    a("v_cndmask_b32 v22, v23, v22, vcc")
    a("v_cndmask_b32 v24, v24, 8, vcc")
    a("v_add_u32 v121, s54, v22")
    a("v_add_u32 v122, v121, v24")
    a("v_lshlrev_b32 v22, 2, v17")
    a("v_lshl_add_u32 v22, v19, 8, v22")
    a("v_add_u32 v22, 2048, v22")
    a("v_add_u32 v123, s54, v22")
    for i in range(12):
        a(f"v_mov_b32 v{80+i}, 0")
    a("s_waitcnt lgkmcnt(0)")
    a("s_barrier")
    a("s_waitcnt vmcnt(2)")
    for i in range(7):
        a(f"v_lshlrev_b32 v{8+i}, 16, v{8+i}")
    a(f"v_mul_f32 v14, {f32(LOG2E)}, v14")
    a("v_exp_f32 v14, v14")
    a("s_nop 0")
    a("v_cvt_pk_bf16_f32 v14, v14, v14")
    a("v_and_b32 v14, 0xffff0000, v14")
    a("v_mul_f32 v16, v14, v8")
    a(f"v_mul_f32 v16, {f32(LOG2E)}, v16")
    a("v_mul_f32 v17, v14, v9")
    a("v_mul_f32 v17, 0.15915494, v17")
    a("v_mul_f32 v10, v14, v10")
    a("v_mul_f32 v11, v14, v11")
    a("v_mul_f32 v18, v12, v10")
    a("v_fma_f32 v18, -v13, v11, v18")
    a("v_mul_f32 v19, v12, v11")
    a("v_fma_f32 v19, v13, v10, v19")
    a("v_lshl_add_u32 v20, v1, 4, s54")
    a("ds_write_b128 v20, v[16:19] offset:2048")
    a("v_lshrrev_b32 v6, 4, v1")
    a("v_lshl_add_u32 v6, v6, 8, s54")
    a("v_lshrrev_b32 v3, 5, v1")
    a("v_lshlrev_b32 v4, 9, v3")
    a("v_bfe_u32 v5, v1, 2, 2")
    a("v_lshl_add_u32 v4, v5, 6, v4")
    a("v_bfe_u32 v5, v1, 4, 1")
    a("v_lshl_add_u32 v4, v5, 5, v4")
    a("v_and_b32 v5, 3, v1")
    a("v_lshl_add_u32 v4, v5, 3, v4")
    a("v_add_u32 v4, s54, v4")
    a("v_and_b32 v5, 31, v1")
    a("v_lshlrev_b32 v5, 12, v5")
    a("v_lshl_add_u32 v5, v3, 4, v5")
    a("s_lshl_b32 s59, s58, 17")
    a("s_lshl_b32 s60, s57, 6")
    a("s_add_u32 s59, s59, s60")
    a(f"s_add_u32 s59, s59, {UT}")
    a("s_waitcnt vmcnt(0) lgkmcnt(0)")
    a("ds_read_b64_tr_b16 v[8:9], v4")
    a("ds_read_b64_tr_b16 v[10:11], v4 offset:256")
    a("ds_read_b64_tr_b16 v[12:13], v4 offset:1024")
    a("ds_read_b64_tr_b16 v[14:15], v4 offset:1280")
    for e in range(16):
        a(f"ds_read_b128 {vr(16+4*e,4)}, v6 offset:{2048+16*e}")
        if e == 9:
            a("s_waitcnt lgkmcnt(10)")
            a("buffer_store_dwordx4 v[8:11], v5, s[40:43], s59 offen")
            a("buffer_store_dwordx4 v[12:15], v5, s[40:43], s59 offen offset:32")
    a("s_barrier")
    a("s_waitcnt lgkmcnt(0)")
    XF = [124, 128, 132]; YF = 92
    sets = [(2, 4, 6, 7), (8, 10, 12, 13)]
    def slot(P, L, dst, isY, st):
        t0, t1, e, _ = st
        return [
            [f"v_pk_mul_f32 {vr(t0,2)}, {vr(P,2)}, {vr(L,2)} op_sel_hi:[1,0]"],
            [f"v_exp_f32 v{e}, v{t0}", f"v_fract_f32 v{t0+1}, v{t0+1}"],
            [f"v_cos_f32 v{t1}, v{t0+1}", f"v_sin_f32 v{t1+1}, v{t0+1}"],
            [f"v_pk_mul_f32 {vr(t1,2)}, {vr(t1,2)}, {vr(e,2)} op_sel_hi:[1,0]"],
            ([f"v_pk_mul_f32 {vr(t0,2)}, {vr(t1,2)}, {vr(P+2,2)} op_sel_hi:[1,0] neg_hi:[0,1]",
              f"v_pk_fma_f32 {vr(t0,2)}, {vr(t1,2)}, {vr(P+2,2)}, {vr(t0,2)} op_sel:[1,1,0] op_sel_hi:[0,1,1] neg_lo:[0,1,0] neg_hi:[0,1,0]"] if isY else []),
            [f"v_cvt_pk_bf16_f32 v{dst}, v{t0}, v{t0+1}" if isY else f"v_cvt_pk_bf16_f32 v{dst}, v{t1}, v{t1+1}"],
        ]
    nb = 0
    for s in range(4):
        for t in range(4):
            P = 16 + 4 * (4 * s + t)
            for pair in ((0, 1), (2, 3)):
                sl = []
                for k, T in enumerate(pair):
                    isY = T == 3
                    sl.append(slot(P, 112 + 2 * T, (YF if isY else XF[T]) + t, isY, sets[k]))
                for st in range(6):
                    for k in range(2):
                        for ins in sl[k][st]: a(ins)
            if s == 0 and t in (1, 3):
                a("s_barrier")
        a("s_nop 1")
        for T in range(3):
            a(f"v_mfma_f32_16x16x32_bf16 {vr(80+4*T,4)}, {vr(XF[T],4)}, {vr(YF,4)}, {vr(80+4*T,4)}")
    a.nop(8)
    a("ds_write_b128 v120, v[80:83]")
    a("ds_write_b64 v121, v[84:85]")
    a("ds_write_b64 v122, v[86:87]")
    for r in range(4):
        a(f"ds_write_b32 v123, v{88+r} offset:{64*r}")
    a("v_mov_b32 v2, 1")
    a("v_mov_b32 v3, s61")
    a("s_xor_b32 s64, s61, 4")
    a("v_mov_b32 v4, s64")
    a("s_waitcnt lgkmcnt(0)")
    a("ds_write_b32 v3, v2")
    a(f"s_mul_i32 s65, s52, {KRS}")
    a(f"s_add_u32 s65, s65, {KR}")
    a("s_lshl_b32 s66, s53, 11")
    a("s_add_u32 s66, s66, s65")
    a("v_lshlrev_b32 v6, 4, v1")
    a.label("L1_poll")
    a("ds_read_b32 v5, v4")
    a("s_waitcnt lgkmcnt(0)")
    a("v_readfirstlane_b32 s67, v5")
    a("s_nop 1")
    a("s_cmp_lg_u32 s67, 1")
    a("s_cbranch_scc1 L1_poll")
    for o in range(2):
        for k in range(8):
            a(f"ds_read_b32 v{16+16*o+k}, v{96+8*o+k}")
            if k == 6: a("s_waitcnt lgkmcnt(7)") if o else None
            a(f"ds_read_b32 v{24+16*o+k}, v{96+8*o+k} offset:3072")
            if k == 6 and o == 0: a("s_waitcnt lgkmcnt(8)")
    a("s_waitcnt lgkmcnt(0)")
    for o in range(2):
        for k in range(8):
            a(f"v_add_f32 v{16+16*o+k}, v{16+16*o+k}, v{24+16*o+k}")
        for k in range(4):
            a(f"v_cvt_pk_bf16_f32 v{48+4*o+k}, v{16+16*o+2*k}, v{17+16*o+2*k}")
        a(f"buffer_store_dwordx4 {vr(48+4*o,4)}, v6, s[40:43], s66 offen offset:{1024*o}")
    for i in range(4):
        a(f"v_mov_b32 v{56+i}, 0")
    a("s_cmp_eq_u32 s53, 0")
    a("s_cbranch_scc1 L1_end")
    a("s_add_u32 s66, s65, 4096")
    a("s_mov_b64 exec, 3")
    a("buffer_store_dwordx4 v[56:59], v6, s[40:43], s66 offen")
VG = 136
if __name__ == "__main__":
    a = gen()
    for p in check(a.lines, "k1"): print(p)
```

```python
from common import *
NAME = "attn_conv_kernel"
LDS = 128 * 1024
VG = 168
QR = 4; IDX = 8; KA = 9; VA = 10
S = [16, 32]; CB = 48; O = 64; KFR = [80, 84]; VFR = [88, 96]; M = 104

def gen():
    a = A()
    head(a, NAME)
    a("s_cmp_ge_u32 s2, 256")
    a("s_cbranch_scc1 L2_end")
    a("s_load_dwordx2 s[4:5], s[0:1], 112")
    a("v_lshrrev_b32 v2, 6, v0")
    a("v_and_b32 v1, 63, v0")
    a("v_readfirstlane_b32 s3, v2")
    a("s_nop 1")
    a("s_cmp_ge_u32 s3, 8")
    a("s_cbranch_scc1 L2_conv")
    attn(a)
    a("s_endpgm")
    a.label("L2_conv")
    conv(a)
    a.label("L2_end")
    a("s_endpgm")
    return a

def rowmax(a, src, first):
    if first:
        a(f"v_max3_f32 v{M}, v{src}, v{src+1}, v{src+2}")
        rest = list(range(src + 3, src + 16))
    else:
        rest = list(range(src, src + 16))
    while len(rest) >= 2:
        a(f"v_max3_f32 v{M}, v{M}, v{rest[0]}, v{rest[1]}"); rest = rest[2:]
    if rest: a(f"v_max_f32 v{M}, v{M}, v{rest[0]}")

def set_c(a):
    a(f"v_mov_b32 v{M+1}, v{M}")
    a("s_nop 1")
    a(f"v_permlane32_swap_b32 v{M}, v{M+1}")
    a("s_nop 1")
    a(f"v_max_f32 v{M}, v{M}, v{M+1}")
    for i in range(16):
        a(f"v_sub_f32 v{CB+i}, 0, v{M}")

def attn(a):
    a("s_and_b32 s12, s2, 31")
    a("s_lshr_b32 s13, s2, 5")
    a("v_lshlrev_b32 v3, 4, v1")
    a("s_lshl_b32 s14, s12, 16")
    a("s_lshl_b32 s15, s13, 3")
    a("s_add_u32 s15, s15, s3")
    a("s_lshl_b32 s16, s15, 10")
    a("s_add_u32 s16, s16, s14")
    a("s_lshl_b32 s17, s3, 10")
    a("s_add_u32 s18, s14, s17")
    a(f"s_add_u32 s18, s18, {KF}")
    a("s_waitcnt lgkmcnt(0)")
    srd(a, 8, 4, WS_USED)
    a(f"buffer_load_dwordx4 {vr(QR,4)}, v3, s[8:11], s16 offen")
    for j in range(8):
        a(f"s_add_u32 s19, s13, {j}")
        a("s_and_b32 s19, s19, 7")
        a("s_lshl_b32 s19, s19, 13")
        a("s_add_u32 s19, s19, s18")
        a(f"s_add_u32 m0, s17, {j*8192}")
        a(f"s_add_u32 s20, s19, {VF-KF}")
        a("buffer_load_dwordx4 v3, s[8:11], s19 offen lds")
        a(f"s_add_u32 m0, s17, {65536 + j*8192}")
        a("s_nop 0")
        a("buffer_load_dwordx4 v3, s[8:11], s20 offen lds")
    a(f"v_mov_b32 v{IDX}, 0xdddddddd")
    a("v_and_b32 v11, 27, v1")
    a("v_cmp_eq_u32 vcc, 16, v11")
    a("v_mov_b32 v12, 0x3f803f80")
    a("s_nop 0")
    a("v_cndmask_b32 v12, 0, v12, vcc")
    for b in range(2):
        for i in range(8):
            a(f"v_mov_b32 v{VFR[b]+i}, v12")
    a("v_and_b32 v11, 15, v1")
    a("v_lshlrev_b32 v11, 4, v11")
    a("v_lshrrev_b32 v12, 5, v1")
    a("v_lshl_add_u32 v11, v12, 8, v11")
    a("v_add_u32 v11, 0x10000, v11")
    a("s_mov_b32 s22, 0xffff")
    a("s_mov_b32 s23, 0xffff")
    a("s_mov_b32 s24, 0")
    a("s_mov_b32 s26, 0")
    a("s_waitcnt vmcnt(14)")
    a("s_barrier")
    a(f"ds_read_b128 {vr(KFR[0],4)}, v3")
    a("s_waitcnt lgkmcnt(0)")
    a(f"v_mfma_f32_32x32x16_bf16 {vr(S[0],16)}, {vr(KFR[0],4)}, {vr(QR,4)}, 0")
    a.nop(12)
    rowmax(a, S[0], True)
    a.label("L2_start")
    set_c(a)
    a(f"v_mov_b32 v{KA}, v3")
    a(f"v_mov_b32 v{VA}, v11")
    a(f"ds_read_b128 {vr(KFR[0],4)}, v{KA}")
    a(f"ds_read_b128 {vr(KFR[1],4)}, v{KA} offset:1024")
    a("s_mov_b64 exec, s[22:23]")
    a(f"ds_read_b128 {vr(VFR[0],4)}, v{VA}")
    a(f"ds_read_b128 {vr(VFR[0]+4,4)}, v{VA} offset:512")
    a("s_mov_b64 exec, -1")
    for i in range(16):
        a(f"v_mov_b32 v{O+i}, 0")
    for i in range(8):
        a(f"v_mov_b32 v{S[1]+8+i}, 0")
    a("s_mov_b32 s25, 0")
    a("s_waitcnt lgkmcnt(3)")
    a(f"v_mfma_f32_32x32x16_bf16 {vr(S[0],16)}, {vr(KFR[0],4)}, {vr(QR,4)}, {vr(CB,16)}")
    a.nop(12)
    a(".p2align 6")
    a.label("L2_loop")
    body = A()
    for t in range(8):
        x = t & 1; y = x ^ 1
        E = lambda i: body(f"v_exp_f32 v{S[x]+i}, v{S[x]+i}")
        E(0); E(1)
        body(f"v_smfmac_f32_32x32x32_bf16 {vr(O,16)}, {vr(VFR[y]+4,4)}, {vr(S[y]+8,8)}, v{IDX}")
        E(2); E(3); E(4); E(5); E(6)
        body("s_waitcnt lgkmcnt(0)")
        body(f"v_mfma_f32_32x32x16_bf16 {vr(S[y],16)}, {vr(KFR[y],4)}, {vr(QR,4)}, {vr(CB,16)}")
        if t == 6:
            body("s_cmp_gt_u32 s26, 2")
            body("s_cbranch_scc0 L2_sync")
            body.label("L2_synced")
        body(f"ds_read_b128 {vr(KFR[x],4)}, v{KA} offset:{(t+2)*1024}")
        body("s_mov_b64 exec, s[22:23]")
        body(f"ds_read_b128 {vr(VFR[y],4)}, v{VA} offset:{(t+1)*1024}")
        body(f"ds_read_b128 {vr(VFR[y]+4,4)}, v{VA} offset:{(t+1)*1024+512}")
        body("s_mov_b64 exec, -1")
        E(7); E(8); E(9); E(10); E(11)
        body(f"v_smfmac_f32_32x32x32_bf16 {vr(O,16)}, {vr(VFR[x],4)}, {vr(S[x],8)}, v{IDX}")
        if t == 7:
            body(f"v_add_u32 v{KA}, 0x2000, v{KA}")
            body(f"v_add_u32 v{VA}, 0x2000, v{VA}")
            body("s_add_u32 s25, s25, 1")
            body("s_cmp_lt_u32 s25, 8")
        E(12); E(13); E(14); E(15)
    for p in check(body.lines + body.lines, "k2loop"): print(p)
    a.lines += body.lines
    a("s_cbranch_scc1 L2_loop")
    a("s_nop 1")
    a(f"v_smfmac_f32_32x32x32_bf16 {vr(O,16)}, {vr(VFR[1]+4,4)}, {vr(S[1]+8,8)}, v{IDX}")
    a("s_lshl_b32 s16, s15, 15")
    a("s_lshl_b32 s17, s12, 10")
    a("s_add_u32 s16, s16, s17")
    a(f"s_add_u32 s16, s16, {OF}")
    a.nop(9)
    a(f"v_cmp_nge_f32 vcc, {f32(2.0**40)}, v{O+8}")
    a(f"v_rcp_f32 v{M}, v{O+8}")
    a("s_nop 3")
    a("s_cmp_lg_u32 s24, 0")
    a("s_cbranch_scc1 L2_fin")
    a("s_cbranch_vccnz L2_fallback")
    a.label("L2_fin")
    for i in range(8):
        a(f"v_mul_f32 v{O+i}, v{O+i}, v{M}")
    for i in range(4):
        a(f"v_cvt_pk_bf16_f32 v{S[0]+i}, v{O+2*i}, v{O+2*i+1}")
    a(f"buffer_store_dwordx4 {vr(S[0],4)}, v3, s[8:11], s16 offen")
    a("s_endpgm")
    a.label("L2_sync")
    a("s_add_u32 s26, s26, 1")
    a("s_cmp_eq_u32 s26, 2")
    a("s_cbranch_scc1 L2_synced")
    a("s_cmp_eq_u32 s26, 1")
    a("s_cbranch_scc0 L2_sync2")
    a("s_waitcnt vmcnt(10)")
    a("s_barrier")
    a("s_branch L2_synced")
    a.label("L2_sync2")
    a("s_waitcnt vmcnt(0)")
    a("s_barrier")
    a("s_branch L2_synced")
    a.label("L2_fallback")
    a("s_mov_b32 s24, 1")
    a("s_mov_b32 s25, 0")
    a(f"v_mov_b32 v{KA}, v3")
    a(f"v_mov_b32 v{M}, 0xff800000")
    a("s_waitcnt lgkmcnt(0)")
    a.label("L2_fb_loop")
    a(f"ds_read_b128 {vr(KFR[0],4)}, v{KA}")
    a(f"v_add_u32 v{KA}, 0x400, v{KA}")
    a("s_waitcnt lgkmcnt(0)")
    a(f"v_mfma_f32_32x32x16_bf16 {vr(S[0],16)}, {vr(KFR[0],4)}, {vr(QR,4)}, 0")
    a.nop(12)
    rowmax(a, S[0], False)
    a("s_add_u32 s25, s25, 1")
    a("s_cmp_lt_u32 s25, 64")
    a("s_cbranch_scc1 L2_fb_loop")
    a("s_branch L2_start")

def conv(a):
    a("s_setprio 3")
    a("s_sub_u32 s3, s3, 8")
    a("s_lshr_b32 s12, s3, 1")
    a("s_lshl_b32 s13, s2, 1")
    a("s_add_u32 s12, s12, s13")
    a(f"s_mul_i32 s13, s12, {KRS}")
    a(f"s_add_u32 s13, s13, {KR}")
    a("s_lshl_b32 s14, s12, 12")
    a(f"s_add_u32 s15, s14, {UT}")
    a(f"s_add_u32 s14, s14, {YT}")
    a("v_and_b32 v3, 15, v1")
    a("v_lshrrev_b32 v4, 4, v1")
    a("v_lshlrev_b32 v5, 4, v4")
    a("v_lshlrev_b32 v6, 1, v3")
    a("v_sub_u32 v6, v5, v6")
    a(f"v_add_u32 v6, {4062-3584}, v6")
    a("v_lshl_add_u32 v7, v3, 5, v5")
    a("v_subrev_u32 v7, 32, v7")
    a("v_lshlrev_b32 v10, 5, v3")
    a("v_lshl_add_u32 v10, v4, 3, v10")
    a("s_mov_b32 s28, 0x7fff0000")
    a("s_waitcnt lgkmcnt(0)")
    srd(a, 8, 4, WS_USED)
    a("s_add_u32 s16, s4, s13")
    a("s_addc_u32 s17, s5, 0")
    a("s_mov_b32 s18, 4128")
    a("s_mov_b32 s19, 0x20000")
    a("s_add_u32 s20, s4, s15")
    a("s_addc_u32 s21, s5, 0")
    a("s_mov_b32 s22, 4096")
    a("s_mov_b32 s23, 0x20000")
    a("s_and_b32 s24, s3, 1")
    a("s_cmp_eq_u32 s24, 1")
    a("s_cbranch_scc1 L2_conv1")
    for part, hs in enumerate(([7, 6, 2], [5, 4, 3, 1, 0])):
        if part: a.label("L2_conv1")
        nf = max(hs) + 1
        ACC = 140
        FB = [12, 76]
        def loads(c0):
            fb = FB[c0 & 1]
            a("v_min_u32 v8, s28, v7")
            a("v_add_u32 v9, 512, v7")
            for i in range(nf):
                a(f"buffer_load_dwordx4 {vr(fb+4*i,4)}, v6, s[16:19], 0 offen offset:{512*(7-i)}")
                if i == 0: a(f"buffer_load_dwordx4 {vr(fb+32,4)}, v8, s[20:23], 0 offen")
                else: a(f"buffer_load_dwordx4 {vr(fb+32+4*i,4)}, v9, s[20:23], 0 offen offset:{512*(i-1)}")
            a("v_subrev_u32 v6, 64, v6")
            a("v_subrev_u32 v7, 64, v7")
        loads(0)
        for i in range(4 * len(hs)):
            a(f"v_mov_b32 v{ACC+i}, 0")
        a("s_barrier"); a("s_barrier"); a("s_barrier")
        for c0 in range(8):
            if c0 < 7:
                loads(c0 + 1)
                a(f"s_waitcnt vmcnt({2*nf})")
            else:
                a("s_waitcnt vmcnt(0)")
            fb = FB[c0 & 1]
            seq = []
            for c1 in range(nf):
                for k, h in enumerate(hs):
                    if c1 <= h: seq.append((k, c1, h - c1))
            for k, c1, hp in seq:
                a(f"v_mfma_f32_16x16x32_bf16 {vr(ACC+4*k,4)}, {vr(fb+4*c1,4)}, {vr(fb+32+4*hp,4)}, {vr(ACC+4*k,4)}")
        a.nop(8)
        for k, h in enumerate(hs):
            a(f"v_cvt_pk_bf16_f32 v{12+2*k}, v{ACC+4*k}, v{ACC+4*k+1}")
            a(f"v_cvt_pk_bf16_f32 v{13+2*k}, v{ACC+4*k+2}, v{ACC+4*k+3}")
            a(f"buffer_store_dwordx2 {vr(12+2*k,2)}, v10, s[8:11], s14 offen offset:{512*h}")
        a("s_endpgm")

if __name__ == "__main__":
    a = gen()
    for p in check(a.lines, "k2"): print(p)
```

```python
from common import *
NAME = "oproj_kernel"
LDS = 72 * 1024
VG = 200
def gen():
    a = A()
    head(a, NAME)
    a("s_cmp_ge_u32 s2, 256")
    a("s_cbranch_scc1 L3_end")
    a("s_load_dwordx4 s[4:7], s[0:1], 16")
    a("s_load_dwordx4 s[8:11], s[0:1], 88")
    a("s_load_dwordx2 s[12:13], s[0:1], 112")
    a("v_lshrrev_b32 v2, 6, v0")
    a("v_and_b32 v1, 63, v0")
    a("v_readfirstlane_b32 s3, v2")
    a("s_and_b32 s14, s2, 7")
    a("s_lshl_b32 s14, s14, 2")
    a("s_bfe_u32 s15, s2, 0x20003")
    a("s_add_u32 s14, s14, s15")
    a("s_lshr_b32 s15, s2, 5")
    a("v_lshlrev_b32 v3, 4, v1")
    a("v_lshrrev_b32 v4, 2, v1")
    a("v_and_b32 v5, 3, v1")
    a("v_lshlrev_b32 v5, 4, v5")
    a("v_lshl_add_u32 v6, v4, 10, v5")
    a("v_lshl_add_u32 v7, v4, 12, v5")
    a("v_and_b32 v8, 31, v1")
    a("v_lshrrev_b32 v9, 5, v1")
    a("v_lshlrev_b32 v10, 4, v9")
    a("v_lshl_add_u32 v11, v8, 10, v10")
    a("v_lshl_add_u32 v12, v8, 11, v10")
    a("s_lshr_b32 s16, s3, 1")
    a("s_lshl_b32 s17, s14, 1")
    a("s_add_u32 s16, s16, s17")
    a("s_and_b32 s17, s3, 1")
    a("s_lshl_b32 s18, s15, 1")
    a("s_add_u32 s17, s17, s18")
    a("s_lshl_b32 s18, s17, 17")
    a("s_lshl_b32 s19, s16, 6")
    a("s_add_u32 s18, s18, s19")
    a(f"s_add_u32 s18, s18, {YT}")
    a("s_add_u32 s19, s18, 0x10000")
    a("s_lshl_b32 s20, s17, 6")
    a("s_lshl_b32 s21, s16, 15")
    a("s_add_u32 s21, s21, s20")
    a("s_lshl_b32 s22, s16, 16")
    a("s_add_u32 s22, s22, s20")
    a("s_add_u32 s22, s22, 1024")
    a("s_lshl_b32 s23, s3, 11")
    a("s_add_u32 s23, s23, 0x10000")
    a("s_lshl_b32 s24, s3, 14")
    a("s_lshl_b32 s25, s3, 17")
    a("s_lshl_b32 s26, s15, 7")
    a("s_add_u32 s25, s25, s26")
    a("s_lshl_b32 s26, s14, 16")
    a("s_lshl_b32 s27, s3, 13")
    a("s_add_u32 s26, s26, s27")
    a(f"s_add_u32 s26, s26, {OF}")
    a("s_add_u32 s27, s26, 0x8000")
    a("s_waitcnt lgkmcnt(0)")
    srd(a, 32, 4, 512 * 1024)
    srd(a, 36, 6, 2048 * 1024)
    srd(a, 40, 8, 1024)
    srd(a, 44, 10, 2048 * 2048)
    srd(a, 48, 12, WS_USED)
    a("s_mov_b32 m0, s23")
    a("s_nop 0")
    a("buffer_load_dwordx4 v7, s[48:51], s18 offen lds")
    a("s_add_u32 m0, s23, 1024")
    a("s_nop 0")
    a("buffer_load_dwordx4 v7, s[48:51], s19 offen lds")
    U, D, Y = 16, 24, 32
    a(f"buffer_load_dwordx4 {vr(U,4)}, v11, s[36:39], s21 offen")
    a(f"buffer_load_dwordx4 {vr(U+4,4)}, v11, s[36:39], s21 offen offset:32")
    a(f"buffer_load_dwordx4 {vr(D,4)}, v10, s[40:43], s20 offen")
    a(f"buffer_load_dwordx4 {vr(D+4,4)}, v10, s[40:43], s20 offen offset:32")
    OFR = 64
    ACC = 128
    for i in range(8):
        for cb in range(2):
            a(f"s_add_u32 m0, s24, {(2*i+cb)*1024}")
            a(f"s_add_u32 s28, s25, {i*16384 + cb*64}")
            a("buffer_load_dwordx4 v6, s[32:35], s28 offen lds")
        if i == 4:
            a("s_add_u32 s26, s26, 4096")
            a("s_add_u32 s27, s27, 4096")
        for b in range(2):
            a(f"buffer_load_dwordx4 {vr(OFR+8*i+4*b,4)}, v3, s[48:51], s{26+b} offen offset:{(i&3)*1024}")
    a("v_bfe_u32 v4, v1, 2, 2")
    a("v_lshlrev_b32 v4, 6, v4")
    a("v_bfe_u32 v5, v1, 4, 1")
    a("v_lshl_add_u32 v4, v5, 5, v4")
    a("v_and_b32 v5, 3, v1")
    a("v_lshl_add_u32 v4, v5, 3, v4")
    a("v_lshl_add_u32 v13, v9, 9, v4")
    a("v_add_u32 v13, s23, v13")
    a("v_lshl_add_u32 v14, v9, 8, v4")
    a("v_add_u32 v14, s24, v14")
    for i in range(64):
        a(f"v_mov_b32 v{ACC+i}, 0")
    a("s_waitcnt vmcnt(32)")
    a(f"ds_read_b64_tr_b16 {vr(Y,2)}, v13")
    a(f"ds_read_b64_tr_b16 {vr(Y+2,2)}, v13 offset:256")
    a(f"ds_read_b64_tr_b16 {vr(Y+4,2)}, v13 offset:1024")
    a(f"ds_read_b64_tr_b16 {vr(Y+6,2)}, v13 offset:1280")
    T = 40
    for i in range(8):
        a(f"v_lshlrev_b32 v{T}, 16, v{U+i}")
        a(f"v_and_b32 v{T+1}, 0xffff0000, v{U+i}")
        a(f"v_lshlrev_b32 v{T+2}, 16, v{D+i}")
        a(f"v_and_b32 v{T+3}, 0xffff0000, v{D+i}")
        a(f"v_mul_f32 v{T}, v{T}, v{T+2}")
        a(f"v_mul_f32 v{T+1}, v{T+1}, v{T+3}")
        a(f"v_cvt_pk_bf16_f32 v{U+i}, v{T}, v{T+1}")
    a("s_waitcnt lgkmcnt(0)")
    for i in range(8):
        a(f"v_lshlrev_b32 v{T}, 16, v{U+i}")
        a(f"v_and_b32 v{T+1}, 0xffff0000, v{U+i}")
        a(f"v_lshlrev_b32 v{T+2}, 16, v{Y+i}")
        a(f"v_and_b32 v{T+3}, 0xffff0000, v{Y+i}")
        a(f"v_add_f32 v{T}, v{T}, v{T+2}")
        a(f"v_add_f32 v{T+1}, v{T+1}, v{T+3}")
        a(f"v_cvt_pk_bf16_f32 v{D+i}, v{T}, v{T+1}")
    a(f"buffer_store_dwordx4 {vr(D,4)}, v12, s[44:47], s22 offen")
    a(f"buffer_store_dwordx4 {vr(D+4,4)}, v12, s[44:47], s22 offen offset:32")
    WF = [44, 52]
    def reads(i):
        f = WF[i & 1]
        for cb in range(2):
            a(f"ds_read_b64_tr_b16 {vr(f+4*cb,2)}, v14 offset:{(2*i+cb)*1024}")
            a(f"ds_read_b64_tr_b16 {vr(f+4*cb+2,2)}, v14 offset:{(2*i+cb)*1024+512}")
    a(f"s_waitcnt vmcnt({28+2})")
    reads(0)
    for i in range(8):
        if i < 7:
            a(f"s_waitcnt vmcnt({28+2-4*(i+1)})")
            reads(i + 1)
            a("s_waitcnt lgkmcnt(4)")
        else:
            a("s_waitcnt lgkmcnt(0)")
        f = WF[i & 1]
        for b in range(2):
            for cb in range(2):
                c = ACC + 16 * (2 * b + cb)
                a(f"v_mfma_f32_32x32x16_bf16 {vr(c,16)}, {vr(f+4*cb,4)}, {vr(OFR+8*i+4*b,4)}, {vr(c,16)}")
    a("v_lshlrev_b32 v4, 8, v8")
    a("v_add_u32 v4, s24, v4")
    a("v_and_b32 v5, 7, v1")
    a("v_xor_b32 v5, v5, v9")
    for q in range(4):
        a(f"v_xor_b32 v6, {2*q}, v5")
        a(f"v_lshl_add_u32 v{16+q}, v6, 4, v4")
    a("v_lshrrev_b32 v4, 3, v1")
    a("v_and_b32 v5, 3, v1")
    a("v_lshlrev_b32 v5, 1, v5")
    a("v_xor_b32 v5, v5, v4")
    a("v_lshlrev_b32 v6, 8, v4")
    a("v_bfe_u32 v7, v1, 2, 1")
    a("v_lshl_add_u32 v6, v7, 7, v6")
    a("s_lshl_b32 s28, s3, 12")
    a("v_add_u32 v6, s28, v6")
    a("v_lshl_add_u32 v20, v5, 4, v6")
    a("v_xor_b32 v5, 1, v5")
    a("v_lshl_add_u32 v21, v5, 4, v6")
    a("v_and_b32 v5, 7, v1")
    a("v_lshlrev_b32 v5, 4, v5")
    a("v_lshl_add_u32 v22, v4, 11, v5")
    a("s_lshl_b32 s28, s14, 17")
    a("s_lshl_b32 s29, s3, 15")
    a("s_add_u32 s28, s28, s29")
    a("s_lshl_b32 s29, s15, 7")
    a("s_add_u32 s28, s28, s29")
    a("s_add_u32 s29, s28, 0x4000")
    for b in range(2):
        for cb in range(2):
            for q in range(4):
                a(f"ds_write_b128 v{16+q}, {vr(ACC+16*(2*b+cb)+4*q,4)} offset:{b*8192+cb*128}")
    a("s_waitcnt lgkmcnt(0)")
    a("s_barrier")
    R = 64
    for e in range(2):
        for p in range(4):
            for hs in range(2):
                a(f"ds_read_b128 {vr(R+32*e+8*p+4*hs,4)}, v{20+hs} offset:{p*16384+e*2048}")
    for e in range(2):
        a(f"s_waitcnt lgkmcnt({8*(1-e)})")
        B = R + 32 * e
        for k in range(8):
            a(f"v_add_f32 v{B+k}, v{B+k}, v{B+8+k}")
            a(f"v_add_f32 v{B+16+k}, v{B+16+k}, v{B+24+k}")
        for k in range(8):
            a(f"v_add_f32 v{B+k}, v{B+k}, v{B+16+k}")
        for k in range(4):
            a(f"v_cvt_pk_bf16_f32 v{24+4*e+k}, v{B+2*k}, v{B+2*k+1}")
        a(f"buffer_store_dwordx4 {vr(24+4*e,4)}, v22, s[44:47], s{28+e} offen")
    a.label("L3_end")
    a("s_endpgm")
    return a
if __name__ == "__main__":
    a = gen()
    for p in check(a.lines, "k3"): print(p)
```

```python
import sys, importlib
from common import *
import k1, k2, k3
REF = open("concat_heads__softmax_full_mha__ssm_conv_s4__prompt.s.ref").read().split("\n")
def build(path, mods=(k1, k2, k3)):
    blocks = [m.BLOCK for m in mods]
    hdr = [l for l in REF if l.startswith(";") and "@launch" not in l and "Override launch" not in l and "grid=ceil" not in l]
    hdr = hdr[:17]
    out = "\n".join(hdr) + "\n"
    for m, b in zip(mods, blocks):
        out += f"; @launch kernel={m.NAME} grid=(256,1,1) block=({b},1,1) lds={m.LDS}\n"
    out += '.amdgcn_target "amdgcn-amd-amdhsa--gfx950"\n.text\n'
    for m in mods:
        a = m.gen()
        for p in check(a.lines, m.NAME)[:8]: print("HAZARD", p)
        out += a.text()
    out += '.section .rodata,"a"\n'
    for m in mods:
        out += ".p2align 6\n" + kd(m.NAME, m.VG)
    open(path, "w").write(out)
if __name__ == "__main__":
    build(sys.argv[1] if len(sys.argv) > 1 else "concat_heads__softmax_full_mha__ssm_conv_s4__prompt.s")
```

```python
from asm import A, vr, sr, check
import struct
MB = 1 << 20
QF, KF, VF, OF, UT, YT, KR = 0, 2*MB, 4*MB, 6*MB, 8*MB, 10*MB, 12*MB
KRS = 4160
WS_USED = 16 * MB
STAMPS = 15 * MB
import os
DIAG = bool(int(os.environ.get('DIAG', '0')))
def f32(x):
    return "0x%08x" % struct.unpack("<I", struct.pack("<f", x))[0]
LOG2E = 1.4426950408889634
def srd(a, d, base, nbytes):
    a(f"s_mov_b32 s{d}, s{base}")
    a(f"s_mov_b32 s{d+1}, s{base+1}")
    a(f"s_mov_b32 s{d+2}, {nbytes}")
    a(f"s_mov_b32 s{d+3}, 0x20000")
def kd(name, vgpr, sgpr=96):
    acc = (vgpr + 3) // 4 * 4
    return f""".amdhsa_kernel {name}
  .amdhsa_next_free_vgpr {vgpr}
  .amdhsa_next_free_sgpr {sgpr}
  .amdhsa_accum_offset {acc}
  .amdhsa_group_segment_fixed_size 0
  .amdhsa_kernarg_size 120
  .amdhsa_user_sgpr_count 2
  .amdhsa_user_sgpr_kernarg_segment_ptr 1
  .amdhsa_system_sgpr_workgroup_id_x 1
.end_amdhsa_kernel
"""
def head(a, name):
    a(f".globl {name}")
    a(".p2align 8")
    a(f".type {name},@function")
    a.label(name)

def stamp(a, i):
    if not DIAG: return
    a(f"s_memtime s[{72+2*i}:{73+2*i}]")
    if i == 0: a("s_memrealtime s[90:91]")
def stamp_out(a, kidx, srd_base, wave_sgpr, wave_add=0, n=8):
    if not DIAG: return
    a("s_memtime s[88:89]")
    a("s_memrealtime s[92:93]")
    a("s_mov_b64 exec, -1")
    a("s_lshl_b32 s94, s2, 4")
    a(f"s_add_u32 s94, s94, s{wave_sgpr}")
    a(f"s_add_u32 s94, s94, {kidx*4096 + wave_add}")
    a("s_lshl_b32 s94, s94, 6")
    a(f"s_add_u32 s94, s94, {STAMPS}")
    a("s_waitcnt lgkmcnt(0)")
    a("v_mov_b32 v0, 0")
    for i in range(11):
        a(f"v_writelane_b32 v0, s{72+2*i}, {i}")
    a("v_mbcnt_lo_u32_b32 v1, -1, 0")
    a("v_mbcnt_hi_u32_b32 v1, -1, v1")
    a("v_lshlrev_b32 v1, 2, v1")
    a("s_mov_b64 exec, 0xffff")
    a(f"buffer_store_dword v0, v1, s[{srd_base}:{srd_base+3}], s94 offen")
```

```python
from common import *
NAME = "fused_kernel"
BLOCK = 768
VG = 168
OPT = dict(rot=0, lag=1, unroll=4, sl1=8, sl2=4, slu=4, pu=0, py=0, d1=0)
for kv in os.environ.get('FOPT', '').split(','):
    if kv: OPT[kv.split('=')[0]] = int(kv.split('=')[1])
SLOT = 32768; XO = 24576
E = 131072
KRV = E
UTS = E + 16640
TAB = E + 25856
FL = E + 32000
LDS = FL + 128
XCH = E
BNC = E + 20480
W_LAND, W_CONS, W_P1, W_P2, W_U, W_G, W_Y, W_O, W_MATCH, W_GD, W_MY = 0, 32, 48, 56, 64, 68, 72, 76, 80, 84, 88
FLG = KR
F_U, F_1, F_Y, F_2, EPOCH = FLG, FLG + 2048, FLG + 4096, FLG + 6144, FLG + 8192
WS = 36
_stamp = stamp
def stamp(a, i, d1=None):
    if d1 is None:
        if OPT["d1"] and i >= 2: return
        _stamp(a, i)
    elif OPT["d1"]: _stamp(a, i)
def set_exec(a, mask):
    a(f"s_mov_b32 exec_lo, {mask & 0xffffffff:#x}")
    a(f"s_mov_b32 exec_hi, {mask >> 32:#x}")
nlab = [0]
def lab(p):
    nlab[0] += 1
    return f"L{p}{nlab[0]}"

def signal(a, off, vaddr=2, vone=3):
    a("s_mov_b64 exec, 1")
    a(f"ds_add_u32 v{vaddr}, v{vone} offset:{off}")
    a("s_mov_b64 exec, -1")

def spin_lds(a, off, target, vt, vaddr=2, st=68, pre=False, sleep=0):
    l = lab("sp"); ok = lab("ok")
    if pre:
        a(f"v_readfirstlane_b32 s{st}, v{vt}")
        a("s_nop 0")
        a(f"s_cmp_ge_u32 s{st}, {target}")
        a(f"s_cbranch_scc1 {ok}")
    a("s_mov_b32 s70, 0x400000")
    a.label(l)
    if sleep: a(f"s_sleep {sleep}")
    a(f"ds_read_b32 v{vt}, v{vaddr} offset:{off}")
    a("s_sub_u32 s70, s70, 1")
    a(f"s_cbranch_scc1 {ok}")
    a("s_waitcnt lgkmcnt(0)")
    a(f"v_readfirstlane_b32 s{st}, v{vt}")
    a("s_nop 0")
    a(f"s_cmp_lt_u32 s{st}, {target}")
    a(f"s_cbranch_scc1 {l}")
    a.label(ok)

def poll_flags(a, voff, soff, vt, mask, issued=False, sleep=8):
    l = lab("pf"); ok = lab("pk"); chk = lab("pc")
    a("s_mov_b32 s70, 0x40000")
    set_exec(a, mask)
    first = lab("pi")
    a(f"s_branch {chk if issued else first}")
    a.label(l)
    if sleep: a(f"s_sleep {sleep}")
    a.label(first)
    a(f"buffer_load_dwordx2 {vr(vt,2)}, v{voff}, s[{WS}:{WS+3}], s{soff} offen sc1")
    a.label(chk)
    a("s_sub_u32 s70, s70, 1")
    a(f"s_cbranch_scc1 {ok}")
    a("s_waitcnt vmcnt(0)")
    a(f"v_cmp_eq_u64 vcc, s[34:35], {vr(vt,2)}")
    a("s_nop 3")
    a("s_cmp_eq_u64 vcc, exec")
    a(f"s_cbranch_scc0 {l}")
    a.label(ok)
    a("s_mov_b64 exec, -1")

def publish(a, woff, last, soff, vt, vaddr=2, vone=3):
    skip = lab("pb")
    a("s_waitcnt vmcnt(0)")
    a("s_mov_b64 exec, 1")
    a(f"ds_add_rtn_u32 v{vt}, v{vaddr}, v{vone} offset:{woff}")
    a(f"v_mov_b32 v{vt+2}, s34")
    a(f"v_mov_b32 v{vt+3}, s35")
    a(f"v_mov_b32 v{vt+1}, 0")
    a("s_waitcnt lgkmcnt(0)")
    a(f"v_readfirstlane_b32 s68, v{vt}")
    a("s_nop 0")
    a(f"s_cmp_lg_u32 s68, {last}")
    a(f"s_cbranch_scc1 {skip}")
    a(f"buffer_store_dwordx2 {vr(vt+2,2)}, v{vt+1}, s[{WS}:{WS+3}], s{soff} offen sc1")
    a.label(skip)
    a("s_mov_b64 exec, -1")

def after_kernargs(a):
    a("s_waitcnt lgkmcnt(0)")
    a(f"s_add_u32 s68, s32, {EPOCH}")
    a("s_addc_u32 s69, s33, 0")
    a("s_load_dwordx2 s[34:35], s[68:69], 0")
    srd(a, WS, 32, WS_USED)

def tile_ids(a):
    a("s_and_b32 s52, s2, 3")
    a("s_lshl_b32 s52, s52, 3")
    a("s_bfe_u32 s53, s2, 0x30003")
    a("s_add_u32 s52, s52, s53")
    a("s_bfe_u32 s54, s2, 0x10002")
    a("s_lshl_b32 s54, s54, 2")
    a("s_lshr_b32 s55, s2, 6")
    a("s_add_u32 s54, s54, s55")

def gen():
    nlab[0] = 0
    a = A()
    head(a, NAME)
    a("s_cmp_ge_u32 s2, 256")
    a("s_cbranch_scc1 L_end")
    stamp(a, 0)
    a("s_load_dwordx16 s[4:19], s[0:1], 0")
    a("s_load_dwordx8 s[20:27], s[0:1], 64")
    a("s_load_dwordx4 s[28:31], s[0:1], 96")
    a("s_load_dwordx2 s[32:33], s[0:1], 112")
    a("v_lshrrev_b32 v2, 6, v0")
    a("v_and_b32 v1, 63, v0")
    a("v_readfirstlane_b32 s3, v2")
    a(f"v_mov_b32 v2, {FL}")
    a("v_mov_b32 v3, 1")
    a("s_cmp_ge_u32 s3, 8")
    a("s_cbranch_scc1 L_H")
    a("s_cmp_ge_u32 s3, 4")
    a("s_cbranch_scc1 L_X")
    gemm(a)
    a("s_branch L_attn")
    a.label("L_X")
    aux(a)
    a.label("L_attn")
    attn(a)
    a.label("L_H")
    helper(a)
    a.label("L_end")
    a("s_endpgm")
    return a

def gemm(a):
    a("v_mov_b32 v4, 0")
    a("v_lshl_add_u32 v6, v1, 2, v2")
    set_exec(a, 0xffffffff)
    a("ds_write_b32 v6, v4")
    a("s_mov_b64 exec, -1")
    tile_ids(a)
    a("s_and_b32 s56, s3, 1")
    a("s_lshr_b32 s57, s3, 1")
    a("v_and_b32 v4, 31, v1")
    a("v_lshrrev_b32 v5, 5, v1")
    a("v_bfe_u32 v6, v1, 1, 3")
    a("v_xor_b32 v6, v6, v5")
    a("v_lshlrev_b32 v4, 7, v4")
    a("s_lshl_b32 s58, s56, 12")
    a(f"s_add_u32 s58, s58, {XO}")
    a("v_add_u32 v4, s58, v4")
    after_kernargs(a)
    for s in range(4):
        a(f"v_xor_b32 v7, {2*s}, v6")
        a(f"v_lshl_add_u32 v{8+s}, v7, 4, v4")
        a(f"v_add_u32 v{12+s}, 0x10000, v{8+s}")
    a("v_lshlrev_b32 v4, 10, v5")
    a("v_bfe_u32 v6, v1, 2, 2")
    a("v_lshl_add_u32 v4, v6, 6, v4")
    a("v_bfe_u32 v6, v1, 4, 1")
    a("v_lshl_add_u32 v4, v6, 5, v4")
    a("v_and_b32 v6, 3, v1")
    a("v_lshl_add_u32 v4, v6, 3, v4")
    a("s_lshl_b32 s58, s57, 8")
    a("v_add_u32 v48, s58, v4")
    a("v_add_u32 v49, 0x10000, v48")
    a("s_waitcnt lgkmcnt(0)")
    a("s_add_u32 s34, s34, 1")
    a("s_barrier")
    for i in range(48):
        a(f"v_mov_b32 v{64+i}, 0")
    a("v_and_b32 v52, 3, v1")
    a("v_bfe_u32 v4, v1, 3, 1")
    a("v_lshl_add_u32 v52, v4, 2, v52")
    a("v_bfe_u32 v4, v1, 2, 1")
    a("v_lshl_add_u32 v52, v4, 3, v52")
    a("v_and_b32 v4, 48, v1")
    a("v_add_u32 v52, v52, v4")
    a("v_lshlrev_b32 v52, 4, v52")
    a("v_bfe_u32 v4, v1, 4, 1")
    a("v_lshlrev_b32 v4, 16, v4")
    a("v_lshl_add_u32 v4, v5, 8, v4")
    a("v_and_b32 v5, 15, v1")
    a("v_lshl_add_u32 v53, v5, 4, v4")
    a("s_lshl_b32 s62, s54, 1")
    a("s_add_u32 s62, s62, s57")
    a("s_lshl_b32 s62, s62, 17")
    a("s_lshl_b32 s63, s52, 1")
    a("s_add_u32 s63, s63, s56")
    a("s_lshl_b32 s63, s63, 10")
    a("s_add_u32 s62, s62, s63")
    a("s_add_u32 s63, s62, 65536")
    a(f"s_add_u32 s64, s62, {KF}")
    a(f"s_add_u32 s65, s63, {KF}")
    a(f"s_add_u32 s66, s62, {VF}")
    a(f"s_mov_b32 s67, {f32(0.25 * LOG2E)}")
    a("s_lshl_b32 s59, s54, 5")
    a("s_add_u32 s59, s59, s52")
    a("s_lshl_b32 s59, s59, 3")
    a(f"s_add_u32 s59, s59, {F_1}")
    FB = [16, 32, 112]
    def reads(n):
        b = FB[n % 3]
        sl = (n >> 2) & 3
        hi = sl >> 1
        sb = (sl & 1) * SLOT
        a(f"ds_read_b128 {vr(b,4)}, v{8 + 4*hi + (n & 3)} offset:{sb}")
        for seg in range(3):
            off = sb + ((n & 3) * 3 + seg) * 2048
            a(f"ds_read_b64_tr_b16 {vr(b+4+4*seg,2)}, v{48+hi} offset:{off}")
            a(f"ds_read_b64_tr_b16 {vr(b+6+4*seg,2)}, v{48+hi} offset:{off+512}")
    stamp(a, 1)
    spin_lds(a, W_LAND, 4, 50)
    stamp(a, 2)
    reads(0)
    reads(1)
    for n in range(32):
        m = n + 2
        a(f"s_waitcnt lgkmcnt({7 if n + 1 < 32 else 0})")
        if m % 4 == 0 and m < 32:
            spin_lds(a, W_LAND + 4 * (m // 4), 4, 50, pre=True)
            if m // 4 >= 2: stamp(a, m // 4, 1)
        if n % 4 == 3 and n // 4 < 4: signal(a, W_CONS + 4 * (n // 4))
        if n == 31: signal(a, W_GD)
        b = FB[n % 3]
        a(f"v_mfma_f32_32x32x16_bf16 v[64:79], {vr(b+4,4)}, {vr(b,4)}, v[64:79]")
        if m < 32:
            if (m + 1) % 4 == 0 and m + 1 < 32: a(f"ds_read_b32 v50, v2 offset:{W_LAND + 4*((m+1)//4)}")
            reads(m)
        a(f"v_mfma_f32_32x32x16_bf16 v[80:95], {vr(b+8,4)}, {vr(b,4)}, v[80:95]")
        a(f"v_mfma_f32_32x32x16_bf16 v[96:111], {vr(b,4)}, {vr(b+12,4)}, v[96:111]")
    stamp(a, 3)
    a.nop(11)
    for t in (1, 2, 0):
        if t == 0:
            for i in range(16):
                a(f"v_mul_f32 v{64+i}, s67, v{64+i}")
        for i in range(8):
            a(f"v_cvt_pk_bf16_f32 v{16+8*t+i}, v{64+16*t+2*i}, v{65+16*t+2*i}")
        if t == 1:
            a(f"buffer_store_dwordx4 v[24:27], v52, s[{WS}:{WS+3}], s64 offen sc1")
            a(f"buffer_store_dwordx4 v[28:31], v52, s[{WS}:{WS+3}], s65 offen sc1")
        if t == 2:
            a(f"buffer_store_dwordx4 v[32:35], v53, s[{WS}:{WS+3}], s66 offen sc1")
            a(f"buffer_store_dwordx4 v[36:39], v53, s[{WS}:{WS+3}], s66 offen offset:512 sc1")
        if t == 0:
            a(f"buffer_store_dwordx4 v[16:19], v52, s[{WS}:{WS+3}], s62 offen sc1")
            a(f"buffer_store_dwordx4 v[20:23], v52, s[{WS}:{WS+3}], s63 offen sc1")
    publish(a, W_G, 3, 59, 40)

def aux(a):
    a("s_sub_u32 s51, s3, 4")
    a("s_lshr_b32 s50, s51, 1")
    a("s_lshl_b32 s53, s2, 1")
    a("s_add_u32 s52, s50, s53")
    a("s_and_b32 s53, s51, 1")
    a("s_mul_i32 s54, s51, 4160")
    a(f"s_add_u32 s54, s54, {KRV}")
    a("s_lshl_b32 s55, s52, 8")
    a("s_lshl_b32 s56, s53, 7")
    a("s_add_u32 s55, s55, s56")
    a("v_lshl_add_u32 v7, v1, 1, s55")
    a("s_lshl_b32 s56, s52, 1")
    a("v_mov_b32 v4, s56")
    a("v_lshrrev_b32 v5, 2, v1")
    a("v_lshlrev_b32 v5, 10, v5")
    a("v_and_b32 v6, 3, v1")
    a("v_lshl_add_u32 v5, v6, 4, v5")
    a("s_lshr_b32 s57, s2, 3")
    a("s_lshl_b32 s57, s57, 1")
    a("s_add_u32 s57, s57, s50")
    a("s_and_b32 s58, s2, 7")
    a("s_lshl_b32 s58, s58, 1")
    a("s_add_u32 s58, s58, s53")
    a("s_lshl_b32 s59, s57, 15")
    a("s_lshl_b32 s60, s58, 6")
    a("s_add_u32 s59, s59, s60")
    a("s_add_u32 s60, s59, 16384")
    a("s_waitcnt lgkmcnt(0)")
    a("global_load_ushort v14, v4, s[24:25]")
    for i in range(6):
        a(f"global_load_ushort v{8+i}, v7, s[{12+2*i}:{13+2*i}]")
    srd(a, 44, 10, 2048 * 1024)
    a("s_mov_b32 m0, s54")
    a("s_nop 0")
    a("buffer_load_dwordx4 v5, s[44:47], s59 offen lds")
    a("s_add_u32 m0, s54, 1024")
    a("s_nop 0")
    a("buffer_load_dwordx4 v5, s[44:47], s60 offen lds")
    after_kernargs(a)
    a("v_mov_b32 v16, 0")
    a("v_mov_b32 v17, 0")
    a("v_lshl_add_u32 v18, v1, 2, s54")
    set_exec(a, 0x1ff)
    a("ds_write_b32 v18, v16 offset:4092")
    a("s_mul_i32 s49, s50, 4608")
    a(f"s_add_u32 s49, s49, {UTS}")
    a("s_mov_b32 exec_lo, -1")
    a("s_mov_b32 exec_hi, 0x0fffffff")
    a("v_lshl_add_u32 v18, v1, 3, s49")
    a("ds_write_b64 v18, v[16:17]")
    a("s_mov_b64 exec, -1")
    a("s_waitcnt lgkmcnt(0)")
    a("s_add_u32 s34, s34, 1")
    a("s_barrier")
    a("s_mul_i32 s62, s50, 3072")
    a(f"s_add_u32 s62, s62, {TAB}")
    a("s_lshl_b32 s63, s53, 10")
    a("s_sub_u32 s63, 2047, s63")
    for o in range(2):
        a(f"v_lshlrev_b32 v17, 3, v1")
        a(f"v_sub_u32 v17, s63, v17")
        if o: a("v_subrev_u32 v17, 512, v17")
        a("v_or_b32 v18, 128, v17")
        a("v_ffbh_u32 v18, v18")
        a("v_sub_u32 v18, 24, v18")
        a("v_min_u32 v19, 1, v18")
        a("v_lshlrev_b32 v20, v18, 1")
        a("v_lshrrev_b32 v20, 1, v20")
        a("v_sub_u32 v20, v20, v19")
        a("v_lshlrev_b32 v21, 9, v18")
        a("v_add_u32 v21, s62, v21")
        for k in range(8):
            a(f"v_subrev_u32 v22, {k}, v17")
            a("v_bfe_u32 v23, v22, v18, v19")
            a("v_add3_u32 v22, v22, v23, v20")
            a("v_lshrrev_b32 v22, v18, v22")
            a(f"v_lshl_add_u32 v{96+8*o+k}, v22, 2, v21")
    a("v_and_b32 v17, 15, v1")
    a("v_and_b32 v18, 7, v17")
    a("v_lshrrev_b32 v19, 3, v17")
    a("v_lshl_add_u32 v18, v19, 7, v18")
    a("v_cvt_f32_u32 v112, v18")
    a("v_and_b32 v18, 3, v17")
    a("v_lshlrev_b32 v18, 1, v18")
    a("v_bfe_u32 v20, v17, 2, 1")
    a("v_lshl_add_u32 v18, v20, 7, v18")
    a("v_add_u32 v18, 256, v18")
    a("v_and_b32 v20, 1, v17")
    a("v_lshlrev_b32 v20, 2, v20")
    a("v_bfe_u32 v21, v17, 1, 2")
    a("v_lshl_add_u32 v20, v21, 7, v20")
    a("v_add_u32 v20, 512, v20")
    a("v_cmp_gt_u32 vcc, 8, v17")
    a("s_nop 1")
    a("v_cndmask_b32 v18, v20, v18, vcc")
    a("v_cvt_f32_u32 v114, v18")
    a("v_lshlrev_b32 v18, 7, v17")
    a("v_add_u32 v18, 1024, v18")
    a("v_cvt_f32_u32 v116, v18")
    a("v_lshlrev_b32 v18, 3, v17")
    a("v_cvt_f32_u32 v118, v18")
    a("v_lshrrev_b32 v19, 4, v1")
    a("v_and_b32 v20, 1, v19")
    a("v_lshrrev_b32 v21, 1, v19")
    a("v_lshlrev_b32 v22, 5, v17")
    a("v_lshl_add_u32 v22, v20, 4, v22")
    a("v_lshl_add_u32 v22, v21, 9, v22")
    a("v_add_u32 v120, s62, v22")
    a("v_lshlrev_b32 v22, 4, v17")
    a("v_lshl_add_u32 v22, v20, 8, v22")
    a("v_add_u32 v22, 1024, v22")
    a("v_lshlrev_b32 v23, 3, v17")
    a("v_lshl_add_u32 v23, v20, 8, v23")
    a("v_add_u32 v23, 1536, v23")
    a("v_cmp_gt_u32 vcc, 2, v19")
    a("v_mov_b32 v24, 128")
    a("s_nop 0")
    a("v_cndmask_b32 v22, v23, v22, vcc")
    a("v_cndmask_b32 v24, v24, 8, vcc")
    a("v_add_u32 v121, s62, v22")
    a("v_add_u32 v122, v121, v24")
    a("v_lshlrev_b32 v22, 2, v17")
    a("v_lshl_add_u32 v22, v19, 8, v22")
    a("v_add_u32 v22, 2048, v22")
    a("v_add_u32 v123, s62, v22")
    for i in range(12):
        a(f"v_mov_b32 v{80+i}, 0")
    a("v_lshl_add_u32 v20, v1, 4, s54")
    a("v_lshrrev_b32 v6, 4, v1")
    a("v_lshl_add_u32 v6, v6, 8, s54")
    a("v_lshrrev_b32 v7, 5, v1")
    a("v_lshlrev_b32 v4, 9, v7")
    a("v_bfe_u32 v5, v1, 2, 2")
    a("v_lshl_add_u32 v4, v5, 6, v4")
    a("v_bfe_u32 v5, v1, 4, 1")
    a("v_lshl_add_u32 v4, v5, 5, v4")
    a("v_and_b32 v5, 3, v1")
    a("v_lshl_add_u32 v4, v5, 3, v4")
    a("v_add_u32 v4, s54, v4")
    a("v_and_b32 v5, 31, v1")
    a("v_lshlrev_b32 v5, 12, v5")
    a("v_lshl_add_u32 v5, v7, 4, v5")
    a("s_lshl_b32 s59, s58, 17")
    a("s_lshl_b32 s60, s57, 6")
    a("s_add_u32 s59, s59, s60")
    a(f"s_add_u32 s59, s59, {UT}")
    a("s_and_b32 s60, s2, 7")
    a("s_lshl_b32 s60, s60, 8")
    a("s_and_b32 s61, s2, 0xf8")
    a("s_add_u32 s60, s60, s61")
    a(f"s_add_u32 s60, s60, {F_U}")
    a("s_lshr_b32 s61, s2, 5")
    a("s_lshl_b32 s61, s61, 8")
    a(f"s_add_u32 s61, s61, {F_U}")
    a("s_lshl_b32 s48, s2, 3")
    a(f"s_add_u32 s48, s48, {F_Y}")
    a("v_lshlrev_b32 v152, 3, v1")
    a("v_lshlrev_b32 v153, 4, v1")
    a("s_lshl_b32 s64, s52, 12")
    a("s_lshl_b32 s65, s53, 10")
    a("s_add_u32 s65, s65, s64")
    a(f"s_add_u32 s65, s65, {UT}")
    a(f"s_add_u32 s64, s64, {YT}")
    stamp(a, 1)
    a("s_waitcnt vmcnt(2)")
    for i in range(7):
        a(f"v_lshlrev_b32 v{8+i}, 16, v{8+i}")
    a(f"v_mul_f32 v14, {f32(LOG2E)}, v14")
    a("v_exp_f32 v14, v14")
    a("s_nop 0")
    a("v_cvt_pk_bf16_f32 v14, v14, v14")
    a("v_and_b32 v14, 0xffff0000, v14")
    a("v_mul_f32 v16, v14, v8")
    a("v_mul_f32 v17, v14, v9")
    a("v_mul_f32 v10, v14, v10")
    a("v_mul_f32 v11, v14, v11")
    a(f"v_mul_f32 v16, {f32(LOG2E)}, v16")
    a("v_mul_f32 v17, 0.15915494, v17")
    a("v_mul_f32 v18, v12, v10")
    a("v_mul_f32 v19, v12, v11")
    a("v_fma_f32 v18, -v13, v11, v18")
    a("v_fma_f32 v19, v13, v10, v19")
    a("ds_write_b128 v20, v[16:19] offset:2048")
    for e in range(16):
        a(f"ds_read_b128 {vr(16+4*e,4)}, v6 offset:{2048+16*e}")
    a("s_waitcnt vmcnt(0)")
    for i, off in enumerate((0, 256, 1024, 1280)):
        a(f"ds_read_b64_tr_b16 {vr(156+2*i,2)}, v4 offset:{off}")
    XF = [124, 128, 132]; YF = 92
    sets = [(8, 10, 12), (136, 138, 14), (140, 142, 144), (146, 148, 150)]
    def slot(P, L, dst, isY, st):
        t0, t1, e = st
        return [
            [f"v_pk_mul_f32 {vr(t0,2)}, {vr(P,2)}, {vr(L,2)} op_sel_hi:[1,0]"],
            [f"v_fract_f32 v{t0+1}, v{t0+1}"],
            [f"v_exp_f32 v{e}, v{t0}"],
            [f"v_cos_f32 v{t1}, v{t0+1}"],
            [f"v_sin_f32 v{t1+1}, v{t0+1}"],
            [f"v_pk_mul_f32 {vr(t1,2)}, {vr(t1,2)}, {vr(e,2)} op_sel_hi:[1,0]"],
            ([f"v_pk_mul_f32 {vr(t0,2)}, {vr(t1,2)}, {vr(P+2,2)} op_sel_hi:[1,0] neg_hi:[0,1]"] if isY else []),
            ([] if isY else [f"v_cvt_pk_bf16_f32 v{dst}, v{t1}, v{t1+1}"]),
            ([f"v_pk_fma_f32 {vr(t0,2)}, {vr(t1,2)}, {vr(P+2,2)}, {vr(t0,2)} op_sel:[1,1,0] op_sel_hi:[0,1,1] neg_lo:[0,1,0] neg_hi:[0,1,0]"] if isY else []),
            ([f"v_cvt_pk_bf16_f32 v{dst}, v{t0}, v{t0+1}"] if isY else []),
        ]
    for s in range(4):
        for t in range(4):
            e = 4 * s + t
            if e == 0: a("s_waitcnt lgkmcnt(15)")
            if e == 1:
                a("s_waitcnt lgkmcnt(0)")
                a(f"buffer_store_dwordx4 v[156:159], v5, s[{WS}:{WS+3}], s59 offen{'' if OPT['pu'] else ' sc1'}")
                a(f"buffer_store_dwordx4 v[160:163], v5, s[{WS}:{WS+3}], s59 offen offset:32{'' if OPT['pu'] else ' sc1'}")
            if e == 4:
                publish(a, W_U, 3, 60, 156)
            if e in (8, 12):
                sk = lab("xs")
                a("s_cmp_lg_u32 s51, 0")
                a(f"s_cbranch_scc1 {sk}")
                set_exec(a, 0xffffffff)
                if e == 12:
                    a("s_waitcnt vmcnt(0)")
                    a("v_cmp_eq_u64 vcc, s[34:35], v[156:157]")
                    a("s_nop 3")
                    a("s_cmp_eq_u64 vcc, exec")
                    a("s_cselect_b32 s71, 1, 0")
                    a("v_mov_b32 v158, s71")
                    a(f"ds_write_b32 v2, v158 offset:{W_MY}")
                a(f"buffer_load_dwordx2 v[156:157], v152, s[{WS}:{WS+3}], s61 offen sc1")
                a("s_mov_b64 exec, -1")
                a.label(sk)
            P = 16 + 4 * e
            order = [3, 0, 1, 2]
            sl = [slot(P, 112 + 2 * T, (YF if T == 3 else XF[T]) + t, T == 3, sets[k]) for k, T in enumerate(order)]
            for st in range(10):
                for k in range(4):
                    for ins in sl[k][st]: a(ins)
        a("s_nop 1")
        for T in range(3):
            a(f"v_mfma_f32_16x16x32_bf16 {vr(80+4*T,4)}, {vr(XF[T],4)}, {vr(YF,4)}, {vr(80+4*T,4)}")
    stamp(a, 2)
    stamp(a, 2, 1)
    a("s_cmp_lg_u32 s51, 0")
    a("s_cbranch_scc1 L_xmy")
    a("s_cmp_eq_u32 s71, 1")
    a("s_cbranch_scc1 L_xmy2")
    poll_flags(a, 152, 61, 156, 0xffffffff, issued=True, sleep=OPT["slu"])
    a(f"ds_write_b32 v2, v3 offset:{W_MY}")
    a("s_branch L_xmy2")
    a.label("L_xmy")
    spin_lds(a, W_MY, 1, 156, sleep=1)
    a.label("L_xmy2")
    stamp(a, 3, 1)
    a("s_waitcnt vmcnt(0)")
    a(f"buffer_load_dwordx4 v[156:159], v153, s[{WS}:{WS+3}], s65 offen sc1")
    a("s_cmp_eq_u32 s53, 0")
    a("s_cbranch_scc1 L_xu0")
    a(f"buffer_load_dwordx4 v[160:163], v153, s[{WS}:{WS+3}], s65 offen offset:1024 sc1")
    a(f"buffer_load_dwordx4 v[164:167], v153, s[{WS}:{WS+3}], s65 offen offset:2048 sc1")
    a.label("L_xu0")
    a("s_lshl_b32 s66, s50, 2")
    a("v_add_u32 v4, s66, v2")
    a("s_mul_i32 s66, s50, 8320")
    a("s_lshl_b32 s67, s53, 11")
    a("s_add_u32 s67, s67, s66")
    a(f"s_add_u32 s67, s67, {KRV}")
    a("v_add_u32 v5, s67, v153")
    a("v_add_u32 v6, s49, v153")
    a("s_cmp_eq_u32 s53, 0")
    a("s_cbranch_scc1 L_xw0")
    a("ds_write_b128 v6, v[88:91] offset:480")
    a("s_branch L_xw1")
    a.label("L_xw0")
    for i in range(3):
        a(f"ds_write_b128 v6, {vr(80+4*i,4)} offset:{480+1024*(i+1)}")
    a.label("L_xw1")
    signal(a, W_P1, vaddr=4)
    stamp(a, 4, 1)
    a("v_and_b32 v8, 15, v1")
    a("v_lshrrev_b32 v9, 4, v1")
    a("v_lshlrev_b32 v10, 4, v9")
    a("v_or_b32 v11, 1, v8")
    a("v_lshlrev_b32 v11, 1, v11")
    a("v_sub_u32 v11, v10, v11")
    a("v_and_b32 v12, 1, v8")
    a("v_xor_b32 v12, 1, v12")
    a("v_mul_u32_u24 v12, 4160, v12")
    a(f"s_add_u32 s66, s66, {KRV + 4062 - 512}")
    a("v_add3_u32 v11, v11, v12, s66")
    a("v_lshl_add_u32 v12, v8, 5, v10")
    a("s_add_u32 s67, s49, 448")
    a("v_add_u32 v12, s67, v12")
    a("v_lshlrev_b32 v13, 5, v8")
    a("v_lshl_add_u32 v13, v9, 3, v13")
    spin_lds(a, W_P1, 2, 7, vaddr=4)
    stamp(a, 5, 1)
    a("s_cmp_eq_u32 s53, 0")
    a("s_cbranch_scc1 L_xr0")
    for i in range(3):
        a(f"ds_read_b128 {vr(16+4*i,4)}, v6 offset:{480+1024*(i+1)}")
    a("s_waitcnt lgkmcnt(0)")
    for i in range(9):
        a(f"v_add_f32 v{80+i}, v{80+i}, v{16+i}")
    a("ds_write_b128 v120, v[80:83]")
    a("ds_write_b64 v121, v[84:85]")
    a("ds_write_b64 v122, v[86:87]")
    a("s_mov_b64 exec, 1")
    a("ds_write_b32 v123, v88")
    a("s_mov_b64 exec, -1")
    for o in range(2):
        for k in range(8):
            a(f"ds_read_b32 v{16+8*o+k}, v{96+8*o+k}")
    stamp(a, 6, 1)
    a("s_waitcnt vmcnt(0)")
    for i in range(3):
        a(f"ds_write_b128 v6, {vr(156+4*i,4)} offset:{480+1024*(i+1)}")
    a("s_waitcnt lgkmcnt(3)")
    a("s_branch L_xr1")
    a.label("L_xr0")
    a("ds_read_b128 v[16:19], v6 offset:480")
    a("s_waitcnt lgkmcnt(0)")
    for i in range(4):
        a(f"v_add_f32 v{88+i}, v{88+i}, v{16+i}")
    for r in range(4):
        a(f"ds_write_b32 v123, v{88+r} offset:{64*r}")
    for o in range(2):
        for k in range(8):
            a(f"ds_read_b32 v{16+8*o+k}, v{96+8*o+k}")
    stamp(a, 6, 1)
    a("s_waitcnt vmcnt(0)")
    a("ds_write_b128 v6, v[156:159] offset:480")
    a("s_waitcnt lgkmcnt(1)")
    a.label("L_xr1")
    for o in range(2):
        B = 16 + 8 * o
        for k in range(4):
            a(f"v_cvt_pk_bf16_f32 v{48+8*o+k}, v{B+2*k}, v{B+2*k+1}")
        for k in range(3):
            a(f"v_cvt_pk_bf16_f32 v{52+8*o+k}, v{B+2*k+1}, v{B+2*k+2}")
        a(f"ds_write_b128 v5, {vr(48+8*o,4)} offset:{1024*o}")
        a(f"ds_write_b96 v5, {vr(52+8*o,3)} offset:{4160+1024*o}")
        a(f"ds_write_b16 v5, v{48+8*o} offset:{4158+1024*o}")
        a(f"ds_write_b16_d16_hi v5, v{51+8*o} offset:{4160+12+1024*o}")
    signal(a, W_P2, vaddr=4)
    AV = [11, 14, 15, 10]
    for q in range(1, 4):
        a(f"v_subrev_u32 v{AV[q]}, {1024*q}, v11")
    ACC = 144
    for i in range(20):
        a(f"v_mov_b32 v{ACC+i}, 0")
    spin_lds(a, W_P2, 2, 7, vaddr=4)
    stamp(a, 7, 1)
    stamp(a, 3)
    a("v_mov_b32 v4, 0x3f803f80")
    a("v_bfe_u32 v5, v1, 2, 1")
    a("v_cmp_eq_u32 vcc, 0, v5")
    a("v_lshrrev_b32 v5, 3, v1")
    a("v_and_b32 v6, 7, v1")
    a("v_cndmask_b32 v4, 0, v4, vcc")
    a("v_lshlrev_b32 v5, 9, v5")
    a("v_lshl_add_u32 v5, v6, 2, v5")
    a("v_add_u32 v5, s62, v5")
    a("s_mov_b32 exec_hi, 0xffff")
    a("ds_write_b32 v5, v4")
    a("s_mov_b64 exec, -1")
    a("s_cmp_eq_u32 s53, 1")
    a("s_cbranch_scc1 L_conv1")
    for part, hs in enumerate(([7, 6, 2], [5, 4, 3, 1, 0])):
        if part: a.label("L_conv1")
        nf = max(hs) + 1
        FB = [16, 80]
        def loads(c0):
            fb = FB[c0 & 1]
            for i in range(nf):
                o = 128 if i % 2 == 0 else 0
                a(f"ds_read2_b32 {vr(fb+4*i,2)}, v{AV[i//2]} offset0:{o} offset1:{o+1}")
                a(f"ds_read2_b32 {vr(fb+4*i+2,2)}, v{AV[i//2]} offset0:{o+2} offset1:{o+3}")
                a(f"ds_read_b128 {vr(fb+32+4*i,4)}, v12 offset:{512*i}")
            for q in range((nf + 1) // 2):
                a(f"v_subrev_u32 v{AV[q]}, 64, v{AV[q]}")
            a("v_subrev_u32 v12, 64, v12")
        def step(c0, pre):
            fb = FB[c0 & 1]
            nxt = A()
            if pre:
                sv = a.lines; a.lines = nxt.lines; loads(c0 + 1); a.lines = sv
            mm = []
            for c1 in range(nf):
                for k, h in enumerate(hs):
                    if c1 <= h:
                        mm.append(f"v_mfma_f32_16x16x32_bf16 {vr(ACC+4*k,4)}, {vr(fb+4*c1,4)}, {vr(fb+32+4*(h-c1),4)}, {vr(ACC+4*k,4)}")
            a("s_waitcnt lgkmcnt(0)")
            rest = list(nxt.lines)
            per = -(-len(rest) // (len(mm) - 4)) if rest else 0
            for ins in mm:
                a(ins)
                for _ in range(per):
                    if rest: a(rest.pop(0))
            assert not rest
        loads(0)
        a("s_mov_b32 s66, 0")
        a.label(f"L_cl{part}")
        step(0, True)
        a("s_cmp_eq_u32 s66, 3")
        a(f"s_cbranch_scc1 L_cl{part}_last")
        step(1, True)
        a("s_add_u32 s66, s66, 1")
        a(f"s_branch L_cl{part}")
        a.label(f"L_cl{part}_last")
        step(1, False)
        a.nop(8)
        for k, h in enumerate(hs):
            a(f"v_cvt_pk_bf16_f32 v{16+2*k}, v{ACC+4*k}, v{ACC+4*k+1}")
            a(f"v_cvt_pk_bf16_f32 v{17+2*k}, v{ACC+4*k+2}, v{ACC+4*k+3}")
            a(f"buffer_store_dwordx2 {vr(16+2*k,2)}, v13, s[{WS}:{WS+3}], s64 offen offset:{512*h}{'' if OPT['py'] else ' sc1'}")
        if part == 0: a("s_branch L_convdone")
    a.label("L_convdone")
    publish(a, W_Y, 3, 48, 40)

IDX = 4; LN16 = 5; KA = 6; VA = 7; KB0 = 140; VB0 = 141; VINC = 142
QR = [8, 12]; S = [16, 32]; CB = [48, 64]; O = [80, 96]; KFR = [112, 116]; VFR = [120, 128]; M = [136, 137]; T = 144

def rowmax(a, m, src, first):
    if first:
        a(f"v_max3_f32 v{m}, v{src}, v{src+1}, v{src+2}")
        rest = list(range(src + 3, src + 16))
    else:
        rest = list(range(src, src + 16))
    while len(rest) >= 2:
        a(f"v_max3_f32 v{m}, v{m}, v{rest[0]}, v{rest[1]}"); rest = rest[2:]
    if rest: a(f"v_max_f32 v{m}, v{m}, v{rest[0]}")
def qk(a, x, kf, c=None):
    a(f"v_mfma_f32_32x32x16_bf16 {vr(S[x],16)}, {vr(kf,4)}, {vr(QR[x],4)}, {vr(CB[x],16) if c is None else c}")
def pv(a, x, vf, hi):
    a(f"v_smfmac_f32_32x32x32_bf16 {vr(O[x],16)}, {vr(vf+4*hi,4)}, {vr(S[x]+8*hi,8)}, v{IDX}")

def attn(a):
    U = OPT["unroll"]; assert U == 4
    stamp(a, 4)
    a("s_and_b32 s52, s2, 31")
    a("s_lshr_b32 s53, s2, 5")
    a("s_and_b32 s55, s3, 3")
    a("s_lshr_b32 s56, s3, 2")
    a("s_lshl_b32 s57, s53, 2")
    a("s_add_u32 s57, s57, s55")
    a("s_lshl_b32 s57, s57, 1")
    a("s_lshl_b32 s58, s57, 10")
    a("s_lshl_b32 s54, s52, 16")
    a("s_add_u32 s58, s58, s54")
    a(f"v_lshlrev_b32 v{LN16}, 4, v1")
    a(f"v_mov_b32 v{IDX}, 0xdddddddd")
    a("s_lshl_b32 s59, s56, 15")
    a(f"v_add_u32 v{KB0}, s59, v{LN16}")
    a(f"v_and_b32 v{T}, 15, v1")
    a(f"v_lshlrev_b32 v{T}, 4, v{T}")
    a(f"v_lshrrev_b32 v{T+1}, 5, v1")
    a(f"v_lshl_add_u32 v{T}, v{T+1}, 8, v{T}")
    a("s_add_u32 s59, s59, 0x10000")
    a(f"v_add_u32 v{T}, s59, v{T}")
    a(f"v_and_b32 v{T+1}, 27, v1")
    a(f"v_cmp_eq_u32 vcc, 16, v{T+1}")
    a(f"v_mov_b32 v{T+2}, {TAB+16}")
    a(f"v_mov_b32 v{T+3}, {TAB}")
    a(f"v_cndmask_b32 v{T+2}, v{T+2}, v{T+3}, vcc")
    a(f"v_and_b32 v{T+1}, 16, v1")
    a(f"v_cmp_eq_u32 vcc, 0, v{T+1}")
    a(f"v_mov_b32 v{T+3}, {U*1024}")
    a("s_lshl_b32 s60, s2, 3")
    a(f"v_cndmask_b32 v{VB0}, v{T+2}, v{T}, vcc")
    a(f"v_cndmask_b32 v{VINC}, 0, v{T+3}, vcc")
    a(f"s_add_u32 s60, s60, {F_2}")
    for i in range(4):
        a(f"v_mov_b32 v{VFR[1]+4+i}, 0")
    a("s_mov_b32 s64, 0")
    a(f"s_mov_b32 s66, {8 // U - 1}")
    spin_lds(a, W_MATCH, 1, T, sleep=2)
    a(f"buffer_load_dwordx4 {vr(QR[0],4)}, v{LN16}, s[{WS}:{WS+3}], s58 offen sc1")
    a(f"buffer_load_dwordx4 {vr(QR[1],4)}, v{LN16}, s[{WS}:{WS+3}], s58 offen offset:1024 sc1")
    a("s_barrier")
    a(f"ds_read_b128 {vr(KFR[0],4)}, v{KB0}")
    a("s_waitcnt vmcnt(0) lgkmcnt(0)")
    qk(a, 0, KFR[0], "0"); qk(a, 1, KFR[0], "0")
    a.nop(11)
    rowmax(a, M[0], S[0], True)
    rowmax(a, M[1], S[1], True)
    a.label("L_start")
    for x in range(2):
        a(f"v_mov_b32 v{T+x}, v{M[x]}")
    a(f"v_mov_b32 v{KA}, v{KB0}")
    a(f"v_mov_b32 v{VA}, v{VB0}")
    for x in range(2):
        a(f"v_permlane32_swap_b32 v{M[x]}, v{T+x}")
    a(f"ds_read_b128 {vr(KFR[0],4)}, v{KA}")
    a(f"ds_read_b128 {vr(KFR[1],4)}, v{KA} offset:1024")
    a(f"ds_read_b128 {vr(VFR[0],4)}, v{VA}")
    a(f"ds_read_b128 {vr(VFR[0]+4,4)}, v{VA} offset:512")
    for x in range(2):
        a(f"v_max_f32 v{M[x]}, v{M[x]}, v{T+x}")
    for i in range(16):
        a(f"v_sub_f32 v{CB[0]+i}, 0, v{M[0]}")
    a("s_waitcnt lgkmcnt(3)")
    a("s_mov_b32 s65, 0")
    qk(a, 0, KFR[0])
    for i in range(16):
        a(f"v_sub_f32 v{CB[1]+i}, 0, v{M[1]}")
    for x in range(2):
        for i in range(9):
            a(f"v_mov_b32 v{O[x]+i}, 0")
    for i in range(8):
        a(f"v_mov_b32 v{S[1]+8+i}, 0")
    stamp(a, 5)
    a(".p2align 6")
    a.label("L_loop")
    body = A()
    for t in range(U):
        p = t & 1
        for x in range(2):
            y = x ^ 1
            Ex = lambda i: body(f"v_exp_f32 v{S[x]+i}, v{S[x]+i}")
            Ex(0); Ex(1)
            pv(body, y, VFR[p ^ 1] if x == 0 else VFR[p], 1)
            Ex(2); Ex(3); Ex(4)
            if x == 0:
                Ex(5)
                body("s_waitcnt lgkmcnt(0)")
                qk(body, 1, KFR[p])
                if t == U - 2:
                    body("s_cmp_eq_u32 s65, s66")
                    body("s_cbranch_scc1 L_sync")
                    body.label("L_synced")
                body(f"ds_read_b128 {vr(KFR[p],4)}, v{KA} offset:{(t+2)*1024}")
                body(f"ds_read_b128 {vr(VFR[p^1],4)}, v{VA} offset:{(t+1)*1024}")
                body(f"ds_read_b128 {vr(VFR[p^1]+4,4)}, v{VA} offset:{(t+1)*1024+512}")
                for i in range(6, 11): Ex(i)
                pv(body, x, VFR[p], 0)
                for i in range(11, 16): Ex(i)
            else:
                qk(body, 0, KFR[p ^ 1])
                for i in range(5, 11): Ex(i)
                pv(body, x, VFR[p], 0)
                if t == U - 1:
                    body(f"v_add_u32 v{KA}, {U*1024}, v{KA}")
                    body(f"v_add_u32 v{VA}, v{VINC}, v{VA}")
                    body("s_add_u32 s65, s65, 1")
                    body(f"s_cmp_lt_u32 s65, {32 // U}")
                for i in range(11, 16): Ex(i)
    for pr in check(body.lines + body.lines, "loop")[:4]: print(pr)
    a.lines += body.lines
    a("s_cbranch_scc1 L_loop")
    stamp(a, 6)
    a("s_nop 1")
    pv(a, 1, VFR[(U - 1) & 1], 1)
    a("s_mul_i32 s58, s3, 2560")
    a(f"s_add_u32 s58, s58, {XCH}")
    a("s_xor_b32 s59, s3, 4")
    a("s_mul_i32 s59, s59, 2560")
    a(f"s_add_u32 s59, s59, {XCH}")
    a(f"v_add_u32 v{KA}, s58, v{LN16}")
    a(f"v_add_u32 v{VA}, s59, v{LN16}")
    a(f"v_lshrrev_b32 v{T}, 1, v{LN16}")
    a(f"v_add_u32 v{T+1}, s59, v{T}")
    a(f"v_add_u32 v{T}, s58, v{T}")
    a("s_add_u32 s58, s57, s56")
    a("s_lshl_b32 s58, s58, 15")
    a("s_lshl_b32 s59, s52, 10")
    a("s_add_u32 s58, s58, s59")
    a(f"s_add_u32 s58, s58, {OF}")
    a(f"v_add_f32 v{T+3}, v{O[0]+8}, v{O[1]+8}")
    a(f"v_cmp_nge_f32 vcc, {f32(2.0**40)}, v{T+3}")
    a("s_cmp_lg_u32 s64, 0")
    a("s_cbranch_scc1 L_fin")
    a("s_nop 2")
    a("s_cbranch_vccnz L_fallback")
    a.label("L_fin")
    a("s_cmp_eq_u32 s56, 0")
    a("s_cbranch_scc1 L_noswap")
    for i in range(9):
        a(f"v_swap_b32 v{O[0]+i}, v{O[1]+i}")
    a(f"v_swap_b32 v{M[0]}, v{M[1]}")
    a.label("L_noswap")
    a(f"v_mov_b32 v{O[1]+9}, v{M[1]}")
    a(f"ds_write_b128 v{KA}, {vr(O[1],4)}")
    a(f"ds_write_b128 v{KA}, {vr(O[1]+4,4)} offset:1024")
    a(f"ds_write_b64 v{T}, {vr(O[1]+8,2)} offset:2048")
    a("s_waitcnt lgkmcnt(0)")
    a("s_barrier")
    a(f"ds_read_b64 {vr(S[0]+8,2)}, v{T+1} offset:2048")
    a(f"ds_read_b128 {vr(S[0],4)}, v{VA}")
    a(f"ds_read_b128 {vr(S[0]+4,4)}, v{VA} offset:1024")
    a("s_waitcnt lgkmcnt(2)")
    a(f"v_max_f32 v{T}, v{M[0]}, v{S[0]+9}")
    a(f"v_sub_f32 v{T+1}, v{M[0]}, v{T}")
    a(f"v_sub_f32 v{T+2}, v{S[0]+9}, v{T}")
    a(f"v_exp_f32 v{T+1}, v{T+1}")
    a(f"v_exp_f32 v{T+2}, v{T+2}")
    a("s_nop 0")
    a(f"v_mul_f32 v{T}, v{O[0]+8}, v{T+1}")
    a(f"v_fmac_f32 v{T}, v{S[0]+8}, v{T+2}")
    a(f"v_rcp_f32 v{T}, v{T}")
    a("s_nop 0")
    a(f"v_mul_f32 v{T+1}, v{T+1}, v{T}")
    a(f"v_mul_f32 v{T+2}, v{T+2}, v{T}")
    a("s_waitcnt lgkmcnt(0)")
    for i in range(8):
        a(f"v_mul_f32 v{O[0]+i}, v{O[0]+i}, v{T+1}")
    for i in range(8):
        a(f"v_fmac_f32 v{O[0]+i}, v{S[0]+i}, v{T+2}")
    for i in range(4):
        a(f"v_cvt_pk_bf16_f32 v{S[1]+i}, v{O[0]+2*i}, v{O[0]+2*i+1}")
    a(f"buffer_store_dwordx4 {vr(S[1],4)}, v{LN16}, s[{WS}:{WS+3}], s58 offen sc1")
    stamp(a, 7)
    publish(a, W_O, 7, 60, T)
    stamp_out(a, 0, WS, 3)
    a("s_endpgm")
    a.label("L_sync")
    a("s_barrier")
    a("s_branch L_synced")
    a.label("L_fallback")
    a("s_mov_b32 s64, 1")
    a("s_mov_b32 s66, -1")
    a("s_mov_b32 s65, 0")
    a(f"v_mov_b32 v{KA}, v{KB0}")
    a(f"v_mov_b32 v{M[0]}, 0xff800000")
    a(f"v_mov_b32 v{M[1]}, 0xff800000")
    a("s_waitcnt lgkmcnt(0)")
    a.label("L_fb_loop")
    a(f"ds_read_b128 {vr(KFR[0],4)}, v{KA}")
    a(f"v_add_u32 v{KA}, 0x400, v{KA}")
    a("s_waitcnt lgkmcnt(0)")
    qk(a, 0, KFR[0], "0"); qk(a, 1, KFR[0], "0")
    a.nop(12)
    rowmax(a, M[0], S[0], False)
    rowmax(a, M[1], S[1], False)
    a("s_add_u32 s65, s65, 1")
    a("s_cmp_lt_u32 s65, 32")
    a("s_cbranch_scc1 L_fb_loop")
    a("s_branch L_start")

def helper(a):
    a("s_sub_u32 s51, s3, 8")
    tile_ids(a)
    a("s_lshl_b32 s55, s55, 1")
    a("s_add_u32 s53, s53, s55")
    a(f"s_and_b32 s53, s53, {OPT['rot']}")
    a("v_lshrrev_b32 v4, 3, v1")
    a("v_and_b32 v4, 3, v4")
    a("v_lshrrev_b32 v5, 5, v1")
    a("v_lshl_add_u32 v4, v5, 3, v4")
    a("v_lshlrev_b32 v4, 10, v4")
    a("v_lshrrev_b32 v5, 4, v1")
    a("v_and_b32 v6, 7, v1")
    a("v_xor_b32 v5, v5, v6")
    a("v_lshl_add_u32 v8, v5, 4, v4")
    a("v_xor_b32 v5, 4, v5")
    a("v_lshl_add_u32 v9, v5, 4, v4")
    a("v_add_u32 v9, 4096, v9")
    a("v_lshrrev_b32 v4, 5, v1")
    a("v_bfe_u32 v5, v1, 2, 2")
    a("v_lshl_add_u32 v4, v4, 2, v5")
    a("v_mul_u32_u24 v4, 3072, v4")
    a("v_bfe_u32 v5, v1, 4, 1")
    a("v_lshl_add_u32 v4, v5, 6, v4")
    a("v_and_b32 v5, 3, v1")
    a("v_lshl_add_u32 v10, v5, 4, v4")
    a("s_lshl_b32 s57, s52, 16")
    a("s_lshl_b32 s58, s54, 7")
    a("s_lshl_b32 s60, s51, 15")
    a("s_lshl_b32 s61, s51, 2")
    a("v_add_u32 v11, s61, v2")
    a("v_mov_b32 v12, 4")
    a("s_lshl_b32 s67, s51, 14")
    a("s_add_u32 s67, s67, s57")
    a(f"s_mul_i32 s50, s51, {16*3072}")
    a("s_add_u32 s50, s50, s58")
    a("s_lshl_b32 s49, s51, 11")
    a(f"s_add_u32 s49, s49, {XO}")
    a("s_mul_i32 s48, s51, 6144")
    a("s_waitcnt lgkmcnt(0)")
    after_kernargs(a)
    srd(a, 40, 4, 2048 * 1024)
    srd(a, 44, 6, 512 * 3072)
    stamp(a, 1)
    def bases(c, xb, wb):
        a(f"s_add_u32 s62, s53, {c}")
        a("s_and_b32 s62, s62, 7")
        a("s_lshl_b32 s63, s62, 7")
        a(f"s_add_u32 s63, s63, s{xb}")
        a(f"s_mul_i32 s64, s62, {64*3072}")
        a(f"s_add_u32 s64, s64, s{wb}")
    lag = OPT["lag"]
    for c in range(4):
        bases(c, 67, 50)
        for q in range(2):
            a(f"s_add_u32 m0, s49, {c*SLOT + q*1024}")
            a("s_nop 0")
            a(f"buffer_load_dwordx4 v{8+q}, s[40:43], s63 offen lds")
        for seg in range(3):
            for hf in range(2):
                a(f"s_add_u32 m0, s48, {c*SLOT + seg*2048 + hf*1024}")
                a(f"s_add_u32 s65, s64, {seg*1024 + hf*8*3072}")
                a("buffer_load_dwordx4 v10, s[44:47], s65 offen lds")
        if c == 0:
            a("s_waitcnt lgkmcnt(0)")
            a("s_add_u32 s34, s34, 1")
            a("s_barrier")
        if c >= lag:
            a(f"s_waitcnt vmcnt({8*lag})")
            signal(a, W_LAND + 4 * (c - lag))
    for c in range(4 - lag, 4):
        a(f"s_waitcnt vmcnt({8*(3-c)})")
        signal(a, W_LAND + 4 * c)
    stamp(a, 2, 1)
    a("s_add_u32 s53, s53, s51")
    bases(4, 57, 58)
    spin_lds(a, W_CONS, 4, 4, vaddr=11)
    stamp(a, 3, 1)
    for ks in range(4):
        for q in range(2):
            a(f"s_add_u32 m0, s60, {XO + ks*2048 + q*1024}")
            if q == 0 and ks: a("s_add_u32 s63, s63, 16384")
            else: a("s_nop 0")
            a(f"buffer_load_dwordx4 v{8+q}, s[40:43], s63 offen lds")
        for seg in range(3):
            for hf in range(2):
                a(f"s_add_u32 m0, s60, {ks*6144 + seg*2048 + hf*1024}")
                a(f"s_add_u32 s65, s64, {ks*16*3072 + seg*1024 + hf*8*3072}")
                a("buffer_load_dwordx4 v10, s[44:47], s65 offen lds")
    stamp(a, 4, 1)
    a("v_lshlrev_b32 v4, 4, v1")
    a("v_lshlrev_b32 v5, 3, v1")
    a("s_and_b32 s52, s2, 31")
    a("s_lshl_b32 s54, s52, 16")
    a("s_lshl_b32 s55, s51, 11")
    a("s_add_u32 s54, s54, s55")
    a(f"s_add_u32 s54, s54, {KF}")
    a("v_add_u32 v6, s55, v4")
    a("v_add_u32 v7, 0x10000, v6")
    a("s_lshr_b32 s56, s52, 2")
    a("s_lshl_b32 s56, s56, 8")
    a(f"s_add_u32 s56, s56, {F_1}")
    a("s_waitcnt vmcnt(0)")
    a("ds_write_b32 v11, v12 offset:16")
    stamp(a, 5, 1)
    stamp(a, 2)
    a("s_cmp_lg_u32 s51, 0")
    a("s_cbranch_scc1 L_Hw")
    spin_lds(a, W_G, 4, 8, sleep=2)
    poll_flags(a, 5, 56, 8, 0xffffffff, sleep=OPT["sl1"])
    a(f"ds_write_b32 v2, v3 offset:{W_MATCH}")
    a("s_branch L_Hm")
    a.label("L_Hw")
    spin_lds(a, W_MATCH, 1, 8, sleep=1)
    a.label("L_Hm")
    stamp(a, 3)
    R = 16
    def kv_load(j, r):
        a(f"s_add_u32 s62, s54, {j*8192}")
        a(f"s_add_u32 s63, s54, {j*8192 + VF - KF}")
        for i in range(2):
            a(f"buffer_load_dwordx4 {vr(r+4*i,4)}, v4, s[{WS}:{WS+3}], s62 offen offset:{1024*i} sc1")
        for i in range(2):
            a(f"buffer_load_dwordx4 {vr(r+8+4*i,4)}, v4, s[{WS}:{WS+3}], s63 offen offset:{1024*i} sc1")
    def kv_put(j, r):
        for i in range(2):
            a(f"ds_write_b128 v6, {vr(r+4*i,4)} offset:{j*8192 + 1024*i}")
        for i in range(2):
            a(f"ds_write_b128 v7, {vr(r+8+4*i,4)} offset:{j*8192 + 1024*i}")
    order = [0, 4, 1, 5, 2, 6, 3, 7]
    kv_load(0, R); kv_load(4, R + 16)
    spin_lds(a, W_GD, 4, 8)
    a("s_waitcnt vmcnt(4)")
    kv_put(0, R)
    a("s_waitcnt vmcnt(0)")
    kv_put(4, R + 16)
    a("s_waitcnt lgkmcnt(0)")
    a("s_barrier")
    stamp(a, 4)
    for k in range(2, 8): kv_load(order[k], R + 16 * k)
    for k in range(2, 8):
        a(f"s_waitcnt vmcnt({4*(7-k)})")
        kv_put(order[k], R + 16 * k)
    a("s_and_b32 s52, s2, 7")
    a("s_lshl_b32 s52, s52, 2")
    a("s_bfe_u32 s53, s2, 0x20003")
    a("s_add_u32 s52, s52, s53")
    a("s_lshr_b32 s53, s2, 5")
    a("v_lshrrev_b32 v8, 2, v1")
    a("v_and_b32 v9, 3, v1")
    a("v_lshlrev_b32 v9, 4, v9")
    a("v_lshl_add_u32 v10, v8, 10, v9")
    a("v_lshl_add_u32 v11, v8, 12, v9")
    a("s_lshl_b32 s55, s51, 17")
    a("s_lshl_b32 s56, s53, 7")
    a("s_add_u32 s55, s55, s56")
    srd(a, 40, 8, 512 * 1024)
    a("s_waitcnt lgkmcnt(0)")
    a("s_barrier")
    WOF = 8 + 96
    for i in range(8):
        a(f"s_add_u32 s56, s55, {i*16384}")
        for cb in range(2):
            a(f"buffer_load_dwordx4 {vr(WOF+8*i+4*cb,4)}, v10, s[40:43], s56 offen offset:{64*cb}")
    a("s_lshl_b32 s49, s51, 10")
    a(f"s_add_u32 s49, s49, {BNC}")
    a("v_add_u32 v12, s49, v4")
    a("v_bfe_u32 v8, v1, 2, 2")
    a("v_lshlrev_b32 v8, 6, v8")
    a("v_bfe_u32 v9, v1, 4, 1")
    a("v_lshl_add_u32 v8, v9, 5, v8")
    a("v_and_b32 v9, 3, v1")
    a("v_lshl_add_u32 v8, v9, 3, v8")
    a("v_add_u32 v8, s49, v8")
    a("v_lshrrev_b32 v9, 5, v1")
    a("v_lshl_add_u32 v13, v9, 9, v8")
    a("v_lshl_add_u32 v14, v9, 8, v8")
    a("v_and_b32 v8, 31, v1")
    a("v_lshlrev_b32 v15, 4, v9")
    a("v_lshl_add_u32 v6, v8, 10, v15")
    a("v_lshl_add_u32 v7, v8, 11, v15")
    a("s_lshr_b32 s56, s51, 1")
    a("s_lshl_b32 s57, s52, 1")
    a("s_add_u32 s56, s56, s57")
    a("s_and_b32 s57, s51, 1")
    a("s_lshl_b32 s58, s53, 1")
    a("s_add_u32 s57, s57, s58")
    a("s_lshl_b32 s58, s57, 17")
    a("s_lshl_b32 s59, s56, 6")
    a("s_add_u32 s58, s58, s59")
    a(f"s_add_u32 s58, s58, {YT}")
    a("s_add_u32 s59, s58, 0x10000")
    a("s_lshl_b32 s60, s57, 6")
    a("s_lshl_b32 s61, s56, 15")
    a("s_add_u32 s61, s61, s60")
    a("s_lshl_b32 s62, s56, 16")
    a("s_add_u32 s62, s62, s60")
    a("s_add_u32 s62, s62, 1024")
    a("s_lshl_b32 s63, s53, 8")
    a(f"s_add_u32 s63, s63, {F_Y}")
    for i in range(16):
        a(f"s_waitcnt vmcnt({15-i})")
        r = WOF + 4 * i
        a(f"ds_write_b128 v12, {vr(r,4)}")
        a(f"ds_read_b64_tr_b16 {vr(r,2)}, v14")
        a(f"ds_read_b64_tr_b16 {vr(r+2,2)}, v14 offset:512")
    srd(a, 40, 10, 2048 * 1024)
    srd(a, 44, 26, 1024)
    Uu, D, Y, TT = 16, 24, 32, 40
    a(f"buffer_load_dwordx4 {vr(Uu,4)}, v6, s[40:43], s61 offen")
    a(f"buffer_load_dwordx4 {vr(Uu+4,4)}, v6, s[40:43], s61 offen offset:32")
    a(f"buffer_load_dwordx4 {vr(D,4)}, v15, s[44:47], s60 offen")
    a(f"buffer_load_dwordx4 {vr(D+4,4)}, v15, s[44:47], s60 offen offset:32")
    poll_flags(a, 5, 63, 48, 0xffffffff)
    a(f"buffer_load_dwordx4 {vr(Y,4)}, v11, s[{WS}:{WS+3}], s58 offen sc1")
    a(f"buffer_load_dwordx4 {vr(Y+4,4)}, v11, s[{WS}:{WS+3}], s59 offen sc1")
    srd(a, 44, 28, 2048 * 2048)
    for i in range(8):
        a(f"v_lshlrev_b32 v{TT}, 16, v{Uu+i}")
        a(f"v_and_b32 v{TT+1}, 0xffff0000, v{Uu+i}")
        a(f"v_lshlrev_b32 v{TT+2}, 16, v{D+i}")
        a(f"v_and_b32 v{TT+3}, 0xffff0000, v{D+i}")
        a(f"v_mul_f32 v{TT}, v{TT}, v{TT+2}")
        a(f"v_mul_f32 v{TT+1}, v{TT+1}, v{TT+3}")
        a(f"v_cvt_pk_bf16_f32 v{Uu+i}, v{TT}, v{TT+1}")
    for s in range(2):
        a(f"s_waitcnt vmcnt({1-s})")
        a(f"ds_write_b128 v12, {vr(Y+4*s,4)}")
        a(f"ds_read_b64_tr_b16 {vr(Y+4*s,2)}, v13")
        a(f"ds_read_b64_tr_b16 {vr(Y+4*s+2,2)}, v13 offset:256")
    a("s_waitcnt lgkmcnt(0)")
    for i in range(8):
        a(f"v_lshlrev_b32 v{TT}, 16, v{Uu+i}")
        a(f"v_and_b32 v{TT+1}, 0xffff0000, v{Uu+i}")
        a(f"v_lshlrev_b32 v{TT+2}, 16, v{Y+i}")
        a(f"v_and_b32 v{TT+3}, 0xffff0000, v{Y+i}")
        a(f"v_add_f32 v{TT}, v{TT}, v{TT+2}")
        a(f"v_add_f32 v{TT+1}, v{TT+1}, v{TT+3}")
        a(f"v_cvt_pk_bf16_f32 v{D+i}, v{TT}, v{TT+1}")
    a(f"buffer_store_dwordx4 {vr(D,4)}, v7, s[44:47], s62 offen")
    a(f"buffer_store_dwordx4 {vr(D+4,4)}, v7, s[44:47], s62 offen offset:32")
    a("s_lshl_b32 s56, s52, 16")
    a("s_lshl_b32 s57, s51, 13")
    a("s_add_u32 s56, s56, s57")
    a(f"s_add_u32 s56, s56, {OF}")
    a("s_add_u32 s57, s56, 4096")
    a("s_add_u32 s58, s56, 0x8000")
    a("s_add_u32 s59, s56, 0x9000")
    a("s_lshr_b32 s60, s52, 2")
    a("s_lshl_b32 s60, s60, 8")
    a("s_lshl_b32 s61, s51, 6")
    a("s_add_u32 s60, s60, s61")
    a(f"s_add_u32 s60, s60, {F_2}")
    stamp(a, 5)
    a("s_barrier")
    spin_lds(a, W_O, 8, 6, sleep=1)
    poll_flags(a, 5, 60, 6, 0xff, sleep=OPT["sl2"])
    stamp(a, 6)
    OFR = [8, 40]; ACC = [72, 8]
    for b in range(2):
        for i in range(8):
            a(f"buffer_load_dwordx4 {vr(OFR[b]+4*i,4)}, v4, s[{WS}:{WS+3}], s{56+2*b+(i>>2)} offen offset:{(i&3)*1024} sc1")
    for b in range(2):
        if b == 1: a("s_waitcnt vmcnt(7)")
        for i in range(8):
            a(f"s_waitcnt vmcnt({15-8*b-i})")
            for cb in range(2):
                c = ACC[b] + 16 * cb
                a(f"v_mfma_f32_32x32x16_bf16 {vr(c,16)}, {vr(WOF+8*i+4*cb,4)}, {vr(OFR[b]+4*i,4)}, {vr(c,16) if i else 0}")
    F = WOF
    a("s_lshl_b32 s54, s51, 14")
    a(f"v_and_b32 v{F}, 31, v1")
    a(f"v_lshlrev_b32 v{F}, 8, v{F}")
    a(f"v_add_u32 v{F}, s54, v{F}")
    a(f"v_and_b32 v{F+1}, 7, v1")
    a(f"v_lshrrev_b32 v{F+2}, 5, v1")
    a(f"v_xor_b32 v{F+1}, v{F+1}, v{F+2}")
    for q in range(4):
        a(f"v_xor_b32 v{F+2}, {2*q}, v{F+1}")
        a(f"v_lshl_add_u32 v{F+4+q}, v{F+2}, 4, v{F}")
    for cb in range(2):
        for q in range(4):
            a(f"ds_write_b128 v{F+4+q}, {vr(ACC[0]+16*cb+4*q,4)} offset:{cb*128}")
    a(f"v_lshrrev_b32 v{F}, 3, v1")
    a(f"v_and_b32 v{F+1}, 3, v1")
    a(f"v_lshlrev_b32 v{F+1}, 1, v{F+1}")
    a(f"v_xor_b32 v{F+1}, v{F+1}, v{F}")
    a(f"v_lshlrev_b32 v{F+2}, 8, v{F}")
    a(f"v_bfe_u32 v{F+3}, v1, 2, 1")
    a(f"v_lshl_add_u32 v{F+2}, v{F+3}, 7, v{F+2}")
    a("s_lshl_b32 s54, s51, 12")
    a(f"v_add_u32 v{F+2}, s54, v{F+2}")
    a(f"v_lshl_add_u32 v{F+8}, v{F+1}, 4, v{F+2}")
    a(f"v_xor_b32 v{F+1}, 1, v{F+1}")
    a(f"v_lshl_add_u32 v{F+9}, v{F+1}, 4, v{F+2}")
    for cb in range(2):
        for q in range(4):
            a(f"ds_write_b128 v{F+4+q}, {vr(ACC[1]+16*cb+4*q,4)} offset:{8192+cb*128}")
    a(f"v_and_b32 v{F+1}, 7, v1")
    a(f"v_lshlrev_b32 v{F+1}, 4, v{F+1}")
    a(f"v_lshl_add_u32 v{F+10}, v{F}, 11, v{F+1}")
    a("s_lshl_b32 s54, s52, 17")
    a("s_lshl_b32 s55, s51, 15")
    a("s_add_u32 s54, s54, s55")
    a("s_lshl_b32 s55, s53, 7")
    a("s_add_u32 s54, s54, s55")
    a("s_add_u32 s55, s54, 0x4000")
    a("s_waitcnt lgkmcnt(0)")
    a("s_barrier")
    stamp(a, 7)
    Rr = 8
    for e in range(2):
        for p in range(4):
            for hs in range(2):
                a(f"ds_read_b128 {vr(Rr+32*e+8*p+4*hs,4)}, v{F+8+hs} offset:{p*16384+e*2048}")
    for e in range(2):
        a(f"s_waitcnt lgkmcnt({8*(1-e)})")
        B = Rr + 32 * e
        for k in range(8):
            a(f"v_add_f32 v{B+k}, v{B+k}, v{B+8+k}")
            a(f"v_add_f32 v{B+16+k}, v{B+16+k}, v{B+24+k}")
        for k in range(8):
            a(f"v_add_f32 v{B+k}, v{B+k}, v{B+16+k}")
        for k in range(4):
            a(f"v_cvt_pk_bf16_f32 v{72+4*e+k}, v{B+2*k}, v{B+2*k+1}")
        a(f"buffer_store_dwordx4 {vr(72+4*e,4)}, v{F+10}, s[44:47], s{54+e} offen")
    a("s_or_b32 s54, s2, s51")
    a("s_cmp_lg_u32 s54, 0")
    a("s_cbranch_scc1 L_noepoch")
    a("v_mov_b32 v4, s34")
    a("v_mov_b32 v5, s35")
    a(f"v_mov_b32 v6, {EPOCH}")
    a("s_mov_b64 exec, 1")
    a(f"buffer_store_dwordx2 v[4:5], v6, s[{WS}:{WS+3}], 0 offen sc1")
    a.label("L_noepoch")
    stamp_out(a, 0, WS, 3)
```

```python
from common import *
NAME = "qkv_kgen_kernel"
BLOCK = 768
SLOT = 32768
XO = 24576
AB = 128 * 1024
FL = 140 * 1024
LDS = FL + 64
VG = 152
OPT = dict(rot=0, lag=2, loadonly=0, nox=0, now=0, noaux=0, pf=0)
for kv in os.environ.get('K1OPT', '').split(','):
    if kv: OPT[kv.split('=')[0]] = int(kv.split('=')[1])

def tile_ids(a):
    a("s_and_b32 s52, s2, 3")
    a("s_lshl_b32 s52, s52, 3")
    a("s_bfe_u32 s53, s2, 0x30003")
    a("s_add_u32 s52, s52, s53")
    a("s_bfe_u32 s54, s2, 0x10002")
    a("s_lshl_b32 s54, s54, 2")
    a("s_lshr_b32 s55, s2, 6")
    a("s_add_u32 s54, s54, s55")

def signal(a, off, vaddr=2, vone=3):
    a("s_mov_b64 exec, 1")
    a(f"ds_add_u32 v{vaddr}, v{vone} offset:{off}")
    a("s_mov_b64 exec, -1")

def gen():
    a = A()
    head(a, NAME)
    a("s_cmp_ge_u32 s2, 256")
    a("s_cbranch_scc1 L1_end")
    stamp(a, 0)
    a("s_load_dwordx4 s[4:7], s[0:1], 0")
    a("s_load_dwordx2 s[8:9], s[0:1], 24")
    a("s_load_dwordx2 s[10:11], s[0:1], 112")
    a("s_load_dwordx16 s[16:31], s[0:1], 32")
    a("v_lshrrev_b32 v2, 6, v0")
    a("v_and_b32 v1, 63, v0")
    a("v_readfirstlane_b32 s3, v2")
    a(f"v_mov_b32 v2, {FL}")
    a("v_mov_b32 v3, 1")
    a("s_cmp_ge_u32 s3, 8")
    a("s_cbranch_scc1 L1_load")
    a("s_cmp_ge_u32 s3, 4")
    a("s_cbranch_scc1 L1_aux")
    gemm(a)
    stamp_out(a, 0, 40, 3)
    a("s_endpgm")
    a.label("L1_load")
    loader(a)
    a("s_endpgm")
    a.label("L1_aux")
    aux(a)
    a.label("L1_end")
    a("s_endpgm")
    return a

def loader(a):
    a("s_sub_u32 s3, s3, 8")
    tile_ids(a)
    a("s_lshl_b32 s55, s55, 1")
    a("s_add_u32 s53, s53, s55")
    a(f"s_and_b32 s53, s53, {OPT['rot']}")
    a("v_lshrrev_b32 v4, 3, v1")
    a("v_and_b32 v4, 3, v4")
    a("v_lshrrev_b32 v5, 5, v1")
    a("v_lshl_add_u32 v4, v5, 3, v4")
    a("v_lshlrev_b32 v4, 10, v4")
    a("v_lshrrev_b32 v5, 4, v1")
    a("v_and_b32 v6, 7, v1")
    a("v_xor_b32 v5, v5, v6")
    a("v_lshl_add_u32 v8, v5, 4, v4")
    a("v_xor_b32 v5, 4, v5")
    a("v_lshl_add_u32 v9, v5, 4, v4")
    a("v_add_u32 v9, 4096, v9")
    a("v_lshrrev_b32 v4, 5, v1")
    a("v_bfe_u32 v5, v1, 2, 2")
    a("v_lshl_add_u32 v4, v4, 2, v5")
    a("v_mul_u32_u24 v4, 3072, v4")
    a("v_bfe_u32 v5, v1, 4, 1")
    a("v_lshl_add_u32 v4, v5, 6, v4")
    a("v_and_b32 v5, 3, v1")
    a("v_lshl_add_u32 v10, v5, 4, v4")
    a("s_lshl_b32 s57, s52, 16")
    a("s_lshl_b32 s58, s54, 7")
    a("s_lshl_b32 s60, s3, 15")
    a("s_lshl_b32 s61, s3, 2")
    a("v_add_u32 v11, s61, v2")
    a("v_mov_b32 v12, 4")
    a("s_lshl_b32 s67, s3, 14")
    a("s_add_u32 s67, s67, s57")
    a(f"s_mul_i32 s68, s3, {16*3072}")
    a("s_add_u32 s68, s68, s58")
    a("s_lshl_b32 s69, s3, 11")
    a(f"s_add_u32 s69, s69, {XO}")
    a(f"s_mul_i32 s70, s3, 6144")
    a("s_barrier")
    a("s_waitcnt lgkmcnt(0)")
    srd(a, 32, 4, 2048 * 1024)
    srd(a, 36, 6, 512 * 3072)
    if DIAG: srd(a, 40, 10, WS_USED)
    stamp(a, 1)
    def bases(c, xb, wb):
        a(f"s_add_u32 s62, s53, {c}")
        a("s_and_b32 s62, s62, 7")
        a("s_lshl_b32 s63, s62, 7")
        a(f"s_add_u32 s63, s63, s{xb}")
        a(f"s_mul_i32 s64, s62, {64*3072}")
        a(f"s_add_u32 s64, s64, s{wb}")
    lag = OPT["lag"]
    for c in range(4):
        bases(c, 67, 68)
        for q in range(2):
            a(f"s_add_u32 m0, s69, {c*SLOT + q*1024}")
            a("s_nop 0")
            a(f"buffer_load_dwordx4 v{8+q}, s[32:35], s63 offen lds")
        for seg in range(3):
            for hf in range(2):
                a(f"s_add_u32 m0, s70, {c*SLOT + seg*2048 + hf*1024}")
                a(f"s_add_u32 s65, s64, {seg*1024 + hf*8*3072}")
                a("buffer_load_dwordx4 v10, s[36:39], s65 offen lds")
        if c >= lag:
            a(f"s_waitcnt vmcnt({8*lag})")
            signal(a, 4 * (c - lag))
            if c == lag: stamp(a, 2)
    for c in range(4 - lag, 4):
        a(f"s_waitcnt vmcnt({8*(3-c)})")
        signal(a, 4 * c)
    stamp(a, 3)
    a("s_add_u32 s53, s53, s3")
    bases(4, 57, 58)
    if not OPT["loadonly"]:
        a.label("L1_lp")
        a("ds_read_b32 v4, v11 offset:32")
        a("s_waitcnt lgkmcnt(0)")
        a("v_readfirstlane_b32 s65, v4")
        a("s_nop 0")
        a("s_cmp_lt_u32 s65, 4")
        a("s_cbranch_scc1 L1_lp")
    stamp(a, 4)
    for ks in range(4):
        for q in range(2):
            a(f"s_add_u32 m0, s60, {XO + ks*2048 + q*1024}")
            if q == 0 and ks: a("s_add_u32 s63, s63, 16384")
            else: a("s_nop 0")
            a(f"buffer_load_dwordx4 v{8+q}, s[32:35], s63 offen lds")
        for seg in range(3):
            for hf in range(2):
                a(f"s_add_u32 m0, s60, {ks*6144 + seg*2048 + hf*1024}")
                a(f"s_add_u32 s65, s64, {ks*16*3072 + seg*1024 + hf*8*3072}")
                a("buffer_load_dwordx4 v10, s[36:39], s65 offen lds")
    stamp(a, 5)
    a("s_waitcnt vmcnt(0)")
    a("ds_write_b32 v11, v12 offset:16")
    stamp_out(a, 0, 40, 3, 8)

def gemm(a):
    a("v_mov_b32 v4, 0")
    a("v_lshl_add_u32 v5, v1, 2, v2")
    a("s_mov_b64 exec, 0xffff")
    a("ds_write_b32 v5, v4")
    a("s_mov_b64 exec, -1")
    tile_ids(a)
    a("s_and_b32 s56, s3, 1")
    a("s_lshr_b32 s57, s3, 1")
    a("v_and_b32 v4, 31, v1")
    a("v_lshrrev_b32 v5, 5, v1")
    a("v_bfe_u32 v6, v1, 1, 3")
    a("v_xor_b32 v6, v6, v5")
    a("v_lshlrev_b32 v4, 7, v4")
    a("s_lshl_b32 s58, s56, 12")
    a(f"s_add_u32 s58, s58, {XO}")
    a("v_add_u32 v4, s58, v4")
    if OPT["pf"]:
        a("v_and_b32 v54, 15, v1")
        a("v_lshlrev_b32 v54, 10, v54")
        a("v_lshrrev_b32 v55, 4, v1")
        a("v_lshl_add_u32 v54, v55, 7, v54")
        a("v_lshrrev_b32 v55, 3, v1")
        a("v_bfe_u32 v56, v1, 2, 1")
        a("v_lshl_add_u32 v55, v55, 6, v56")
        a("v_mul_u32_u24 v55, 3072, v55")
        a("v_and_b32 v56, 3, v1")
        a("v_lshl_add_u32 v55, v56, 7, v55")
        a("s_and_b32 s69, s2, 3")
        a("s_lshl_b32 s69, s69, 5")
        a("s_lshr_b32 s70, s2, 3")
        a("s_add_u32 s69, s69, s70")
        a("s_lshl_b32 s69, s69, 14")
        a("s_mul_i32 s70, s70, 6144")
        a("s_bfe_u32 s71, s2, 0x10002")
        a("s_lshl_b32 s71, s71, 9")
        a("s_add_u32 s70, s70, s71")
    a("s_waitcnt lgkmcnt(0)")
    a("s_barrier")
    if OPT["pf"]:
        a("s_cmp_lg_u32 s3, 0")
        a("s_cbranch_scc1 L1_nopf")
        srd(a, 32, 4, 2048 * 1024)
        srd(a, 36, 6, 512 * 3072)
        a("buffer_load_dword v57, v54, s[32:35], s69 offen")
        for seg in range(3):
            a(f"buffer_load_dword v57, v55, s[36:39], s70 offen offset:{1024*seg}")
        a("buffer_load_dword v57, v54, s[32:35], s69 offen offset:512")
        a.label("L1_nopf")
    if OPT["loadonly"]: a("s_endpgm")
    for s in range(4):
        a(f"v_xor_b32 v7, {2*s}, v6")
        a(f"v_lshl_add_u32 v{8+s}, v7, 4, v4")
        a(f"v_add_u32 v{12+s}, 0x10000, v{8+s}")
    a("v_lshlrev_b32 v4, 10, v5")
    a("v_bfe_u32 v6, v1, 2, 2")
    a("v_lshl_add_u32 v4, v6, 6, v4")
    a("v_bfe_u32 v6, v1, 4, 1")
    a("v_lshl_add_u32 v4, v6, 5, v4")
    a("v_and_b32 v6, 3, v1")
    a("v_lshl_add_u32 v4, v6, 3, v4")
    a("s_lshl_b32 s58, s57, 8")
    a("v_add_u32 v48, s58, v4")
    a("v_add_u32 v49, 0x10000, v48")
    srd(a, 40, 10, WS_USED)
    for i in range(48):
        a(f"v_mov_b32 v{64+i}, 0")
    a("v_and_b32 v52, 3, v1")
    a("v_bfe_u32 v4, v1, 3, 1")
    a("v_lshl_add_u32 v52, v4, 2, v52")
    a("v_bfe_u32 v4, v1, 2, 1")
    a("v_lshl_add_u32 v52, v4, 3, v52")
    a("v_and_b32 v4, 48, v1")
    a("v_add_u32 v52, v52, v4")
    a("v_lshlrev_b32 v52, 4, v52")
    a("v_bfe_u32 v4, v1, 4, 1")
    a("v_lshlrev_b32 v4, 16, v4")
    a("v_lshl_add_u32 v4, v5, 8, v4")
    a("v_and_b32 v5, 15, v1")
    a("v_lshl_add_u32 v53, v5, 4, v4")
    a("s_lshl_b32 s62, s54, 1")
    a("s_add_u32 s62, s62, s57")
    a("s_lshl_b32 s62, s62, 17")
    a("s_lshl_b32 s63, s52, 1")
    a("s_add_u32 s63, s63, s56")
    a("s_lshl_b32 s63, s63, 10")
    a("s_add_u32 s62, s62, s63")
    a("s_add_u32 s63, s62, 65536")
    a(f"s_add_u32 s64, s62, {KF}")
    a(f"s_add_u32 s65, s63, {KF}")
    a(f"s_add_u32 s66, s62, {VF}")
    a(f"s_mov_b32 s67, {f32(0.25 * LOG2E)}")
    FB = [16, 32, 112]
    def reads(n):
        b = FB[n % 3]
        sl = (n >> 2) & 3
        hi = sl >> 1
        sb = (sl & 1) * SLOT
        a(f"ds_read_b128 {vr(b,4)}, v{8 + 4*hi + (n & 3)} offset:{sb}")
        for seg in range(3):
            off = sb + ((n & 3) * 3 + seg) * 2048
            a(f"ds_read_b64_tr_b16 {vr(b+4+4*seg,2)}, v{48+hi} offset:{off}")
            a(f"ds_read_b64_tr_b16 {vr(b+6+4*seg,2)}, v{48+hi} offset:{off+512}")
    def arrive(c):
        a("v_readfirstlane_b32 s68, v50")
        a("s_nop 0")
        a("s_cmp_ge_u32 s68, 4")
        a(f"s_cbranch_scc1 L1_ok{c}")
        a.label(f"L1_sp{c}")
        a(f"ds_read_b32 v50, v2 offset:{4*c}")
        a("s_waitcnt lgkmcnt(0)")
        a("v_readfirstlane_b32 s68, v50")
        a("s_nop 0")
        a("s_cmp_lt_u32 s68, 4")
        a(f"s_cbranch_scc1 L1_sp{c}")
        a.label(f"L1_ok{c}")
    a("v_mov_b32 v50, 0")
    stamp(a, 1)
    a("s_nop 0")
    arrive(0)
    stamp(a, 2)
    reads(0)
    reads(1)
    for n in range(32):
        m = n + 2
        flag_before = (m + 1) % 4 == 0 and m + 1 < 32
        young = (7 if n + 1 < 32 else 0) + (1 if (n + 2) % 4 == 0 and n + 2 < 32 else 0)
        if m % 4 == 0 and m < 32:
            a("s_waitcnt lgkmcnt(7)")
            arrive(m // 4)
            if m in (4, 8, 16, 24): stamp(a, {4: 3, 8: 4, 16: 5, 24: 6}[m])
        else:
            a(f"s_waitcnt lgkmcnt({7 if n + 1 < 32 else 0})")
        if n % 4 == 3 and n // 4 < 4: signal(a, 32 + 4 * (n // 4))
        b = FB[n % 3]
        a(f"v_mfma_f32_32x32x16_bf16 v[64:79], {vr(b+4,4)}, {vr(b,4)}, v[64:79]")
        if m < 32:
            if flag_before: a(f"ds_read_b32 v50, v2 offset:{4*((m+1)//4)}")
            reads(m)
        a(f"v_mfma_f32_32x32x16_bf16 v[80:95], {vr(b+8,4)}, {vr(b,4)}, v[80:95]")
        a(f"v_mfma_f32_32x32x16_bf16 v[96:111], {vr(b,4)}, {vr(b+12,4)}, v[96:111]")
    stamp(a, 7)
    a.nop(10)
    for i in range(16):
        a(f"v_mul_f32 v{64+i}, s67, v{64+i}")
    for t in (1, 2, 0):
        for i in range(8):
            a(f"v_cvt_pk_bf16_f32 v{16+8*t+i}, v{64+16*t+2*i}, v{65+16*t+2*i}")
        if t == 1:
            a("buffer_store_dwordx4 v[24:27], v52, s[40:43], s64 offen")
            a("buffer_store_dwordx4 v[28:31], v52, s[40:43], s65 offen")
        if t == 2:
            a("buffer_store_dwordx4 v[32:35], v53, s[40:43], s66 offen")
            a("buffer_store_dwordx4 v[36:39], v53, s[40:43], s66 offen offset:512")
        if t == 0:
            a("buffer_store_dwordx4 v[16:19], v52, s[40:43], s62 offen")
            a("buffer_store_dwordx4 v[20:23], v52, s[40:43], s63 offen")

def aux(a):
    if OPT["loadonly"] or OPT["noaux"]: a("s_endpgm")
    a("s_sub_u32 s3, s3, 4")
    a("s_lshr_b32 s52, s3, 1")
    a("s_lshl_b32 s53, s2, 1")
    a("s_add_u32 s52, s52, s53")
    a("s_and_b32 s53, s3, 1")
    a(f"s_mul_i32 s54, s3, 3072")
    a(f"s_add_u32 s54, s54, {AB}")
    a("s_lshl_b32 s55, s52, 8")
    a("s_lshl_b32 s56, s53, 7")
    a("s_add_u32 s55, s55, s56")
    a("v_lshl_add_u32 v7, v1, 1, s55")
    a("s_lshl_b32 s56, s52, 1")
    a("v_mov_b32 v4, s56")
    a("v_lshrrev_b32 v5, 2, v1")
    a("v_lshlrev_b32 v5, 10, v5")
    a("v_and_b32 v6, 3, v1")
    a("v_lshl_add_u32 v5, v6, 4, v5")
    a("s_lshr_b32 s57, s2, 3")
    a("s_lshl_b32 s57, s57, 1")
    a("s_lshr_b32 s58, s3, 1")
    a("s_add_u32 s57, s57, s58")
    a("s_and_b32 s58, s2, 7")
    a("s_lshl_b32 s58, s58, 1")
    a("s_add_u32 s58, s58, s53")
    a("s_lshl_b32 s59, s57, 15")
    a("s_lshl_b32 s60, s58, 6")
    a("s_add_u32 s59, s59, s60")
    a("s_add_u32 s60, s59, 16384")
    a("s_barrier")
    a("s_waitcnt lgkmcnt(0)")
    a("global_load_ushort v14, v4, s[28:29]")
    for i in range(6):
        a(f"global_load_ushort v{8+i}, v7, s[{16+2*i}:{17+2*i}]")
    srd(a, 44, 8, 2048 * 1024)
    a("s_mov_b32 m0, s54")
    srd(a, 40, 10, WS_USED)
    a("buffer_load_dwordx4 v5, s[44:47], s59 offen lds")
    a("s_add_u32 m0, s54, 1024")
    a("s_nop 0")
    a("buffer_load_dwordx4 v5, s[44:47], s60 offen lds")
    a("s_lshl_b32 s61, s3, 2")
    a(f"s_add_u32 s61, s61, {FL+48}")
    a("s_and_b32 s62, s3, 2")
    a("s_mul_i32 s62, s62, 3072")
    a(f"s_add_u32 s62, s62, {AB}")
    a("s_lshl_b32 s63, s53, 10")
    a("s_sub_u32 s63, 2047, s63")
    for o in range(2):
        a(f"v_lshlrev_b32 v17, 3, v1")
        a(f"v_sub_u32 v17, s63, v17")
        if o: a("v_subrev_u32 v17, 512, v17")
        a("v_or_b32 v18, 128, v17")
        a("v_ffbh_u32 v18, v18")
        a("v_sub_u32 v18, 24, v18")
        a("v_min_u32 v19, 1, v18")
        a("v_lshlrev_b32 v20, v18, 1")
        a("v_lshrrev_b32 v20, 1, v20")
        a("v_sub_u32 v20, v20, v19")
        a("v_lshlrev_b32 v21, 9, v18")
        a("v_add_u32 v21, s62, v21")
        for k in range(8):
            a(f"v_subrev_u32 v22, {k}, v17")
            a("v_bfe_u32 v23, v22, v18, v19")
            a("v_add3_u32 v22, v22, v23, v20")
            a("v_lshrrev_b32 v22, v18, v22")
            a(f"v_lshl_add_u32 v{96+8*o+k}, v22, 2, v21")
    a("v_and_b32 v17, 15, v1")
    a("v_and_b32 v18, 7, v17")
    a("v_lshrrev_b32 v19, 3, v17")
    a("v_lshl_add_u32 v18, v19, 7, v18")
    a("v_cvt_f32_u32 v112, v18")
    a("v_and_b32 v18, 3, v17")
    a("v_lshlrev_b32 v18, 1, v18")
    a("v_bfe_u32 v20, v17, 2, 1")
    a("v_lshl_add_u32 v18, v20, 7, v18")
    a("v_add_u32 v18, 256, v18")
    a("v_and_b32 v20, 1, v17")
    a("v_lshlrev_b32 v20, 2, v20")
    a("v_bfe_u32 v21, v17, 1, 2")
    a("v_lshl_add_u32 v20, v21, 7, v20")
    a("v_add_u32 v20, 512, v20")
    a("v_cmp_gt_u32 vcc, 8, v17")
    a("s_nop 1")
    a("v_cndmask_b32 v18, v20, v18, vcc")
    a("v_cvt_f32_u32 v114, v18")
    a("v_lshlrev_b32 v18, 7, v17")
    a("v_add_u32 v18, 1024, v18")
    a("v_cvt_f32_u32 v116, v18")
    a("v_lshlrev_b32 v18, 3, v17")
    a("v_cvt_f32_u32 v118, v18")
    a("v_lshrrev_b32 v19, 4, v1")
    a("v_and_b32 v20, 1, v19")
    a("v_lshrrev_b32 v21, 1, v19")
    a("v_lshlrev_b32 v22, 5, v17")
    a("v_lshl_add_u32 v22, v20, 4, v22")
    a("v_lshl_add_u32 v22, v21, 9, v22")
    a("v_add_u32 v120, s54, v22")
    a("v_lshlrev_b32 v22, 4, v17")
    a("v_lshl_add_u32 v22, v20, 8, v22")
    a("v_add_u32 v22, 1024, v22")
    a("v_lshlrev_b32 v23, 3, v17")
    a("v_lshl_add_u32 v23, v20, 8, v23")
    a("v_add_u32 v23, 1536, v23")
    a("v_cmp_gt_u32 vcc, 2, v19")
    a("v_mov_b32 v24, 128")
    a("s_nop 0")
    a("v_cndmask_b32 v22, v23, v22, vcc")
    a("v_cndmask_b32 v24, v24, 8, vcc")
    a("v_add_u32 v121, s54, v22")
    a("v_add_u32 v122, v121, v24")
    a("v_lshlrev_b32 v22, 2, v17")
    a("v_lshl_add_u32 v22, v19, 8, v22")
    a("v_add_u32 v22, 2048, v22")
    a("v_add_u32 v123, s54, v22")
    for i in range(12):
        a(f"v_mov_b32 v{80+i}, 0")
    a("v_lshl_add_u32 v20, v1, 4, s54")
    a("v_lshrrev_b32 v6, 4, v1")
    a("v_lshl_add_u32 v6, v6, 8, s54")
    a("v_lshrrev_b32 v3, 5, v1")
    a("v_lshlrev_b32 v4, 9, v3")
    a("v_bfe_u32 v5, v1, 2, 2")
    a("v_lshl_add_u32 v4, v5, 6, v4")
    a("v_bfe_u32 v5, v1, 4, 1")
    a("v_lshl_add_u32 v4, v5, 5, v4")
    a("v_and_b32 v5, 3, v1")
    a("v_lshl_add_u32 v4, v5, 3, v4")
    a("v_add_u32 v4, s54, v4")
    a("v_and_b32 v5, 31, v1")
    a("v_lshlrev_b32 v5, 12, v5")
    a("v_lshl_add_u32 v5, v3, 4, v5")
    a("s_lshl_b32 s59, s58, 17")
    a("s_lshl_b32 s60, s57, 6")
    a("s_add_u32 s59, s59, s60")
    a(f"s_add_u32 s59, s59, {UT}")
    stamp(a, 1)
    a("s_waitcnt vmcnt(2)")
    stamp(a, 2)
    for i in range(7):
        a(f"v_lshlrev_b32 v{8+i}, 16, v{8+i}")
    a(f"v_mul_f32 v14, {f32(LOG2E)}, v14")
    a("v_exp_f32 v14, v14")
    a("s_nop 0")
    a("v_cvt_pk_bf16_f32 v14, v14, v14")
    a("v_and_b32 v14, 0xffff0000, v14")
    a("v_mul_f32 v16, v14, v8")
    a("v_mul_f32 v17, v14, v9")
    a("v_mul_f32 v10, v14, v10")
    a("v_mul_f32 v11, v14, v11")
    a(f"v_mul_f32 v16, {f32(LOG2E)}, v16")
    a("v_mul_f32 v17, 0.15915494, v17")
    a("v_mul_f32 v18, v12, v10")
    a("v_mul_f32 v19, v12, v11")
    a("v_fma_f32 v18, -v13, v11, v18")
    a("v_fma_f32 v19, v13, v10, v19")
    a("ds_write_b128 v20, v[16:19] offset:2048")
    a("s_waitcnt lgkmcnt(0)")
    for e in range(16):
        a(f"ds_read_b128 {vr(16+4*e,4)}, v6 offset:{2048+16*e}")
    stamp(a, 3)
    XF = [124, 128, 132]; YF = 92
    sets = [(8, 10, 12), (136, 138, 14), (140, 142, 144), (146, 148, 150)]
    def slot(P, L, dst, isY, st):
        t0, t1, e = st
        return [
            [f"v_pk_mul_f32 {vr(t0,2)}, {vr(P,2)}, {vr(L,2)} op_sel_hi:[1,0]"],
            [f"v_fract_f32 v{t0+1}, v{t0+1}"],
            [f"v_exp_f32 v{e}, v{t0}"],
            [f"v_cos_f32 v{t1}, v{t0+1}"],
            [f"v_sin_f32 v{t1+1}, v{t0+1}"],
            [f"v_pk_mul_f32 {vr(t1,2)}, {vr(t1,2)}, {vr(e,2)} op_sel_hi:[1,0]"],
            ([f"v_pk_mul_f32 {vr(t0,2)}, {vr(t1,2)}, {vr(P+2,2)} op_sel_hi:[1,0] neg_hi:[0,1]"] if isY else []),
            ([] if isY else [f"v_cvt_pk_bf16_f32 v{dst}, v{t1}, v{t1+1}"]),
            ([f"v_pk_fma_f32 {vr(t0,2)}, {vr(t1,2)}, {vr(P+2,2)}, {vr(t0,2)} op_sel:[1,1,0] op_sel_hi:[0,1,1] neg_lo:[0,1,0] neg_hi:[0,1,0]"] if isY else []),
            ([f"v_cvt_pk_bf16_f32 v{dst}, v{t0}, v{t0+1}"] if isY else []),
        ]
    for s in range(4):
        for t in range(4):
            e = 4 * s + t
            if s == 0: a(f"s_waitcnt lgkmcnt({15-e})") if e < 3 else a("s_waitcnt lgkmcnt(0)")
            P = 16 + 4 * e
            order = [3, 0, 1, 2]
            sl = [slot(P, 112 + 2 * T, (YF if T == 3 else XF[T]) + t, T == 3, sets[k]) for k, T in enumerate(order)]
            for st in range(10):
                for k in range(4):
                    for ins in sl[k][st]: a(ins)
            if s == 0 and t == 3:
                a("s_waitcnt vmcnt(0)")
                for i, off in enumerate((0, 256, 1024, 1280)):
                    a(f"ds_read_b64_tr_b16 {vr(16+2*i,2)}, v4 offset:{off}")
            if s == 1 and t == 0:
                a("s_waitcnt lgkmcnt(0)")
                a("buffer_store_dwordx4 v[16:19], v5, s[40:43], s59 offen")
                a("buffer_store_dwordx4 v[20:23], v5, s[40:43], s59 offen offset:32")
        if s == 0: stamp(a, 4)
        a("s_nop 1")
        for T in range(3):
            a(f"v_mfma_f32_16x16x32_bf16 {vr(80+4*T,4)}, {vr(XF[T],4)}, {vr(YF,4)}, {vr(80+4*T,4)}")
    stamp(a, 5)
    a("v_mov_b32 v2, 1")
    a("v_mov_b32 v3, s61")
    a("s_xor_b32 s64, s61, 4")
    a("v_mov_b32 v4, s64")
    a(f"s_mul_i32 s65, s52, {KRS}")
    a(f"s_add_u32 s65, s65, {KR}")
    a("s_lshl_b32 s66, s53, 11")
    a("s_add_u32 s66, s66, s65")
    a("v_lshlrev_b32 v6, 4, v1")
    a("ds_write_b128 v120, v[80:83]")
    a("ds_write_b64 v121, v[84:85]")
    a("ds_write_b64 v122, v[86:87]")
    for r in range(4):
        a(f"ds_write_b32 v123, v{88+r} offset:{64*r}")
    a("ds_write_b32 v3, v2")
    a.label("L1_poll")
    a("ds_read_b32 v5, v4")
    a("s_waitcnt lgkmcnt(0)")
    a("v_readfirstlane_b32 s67, v5")
    a("s_nop 0")
    a("s_cmp_lg_u32 s67, 1")
    a("s_cbranch_scc1 L1_poll")
    stamp(a, 6)
    for o in range(2):
        for k in range(8):
            a(f"ds_read2st64_b32 {vr(16+16*o+2*k,2)}, v{96+8*o+k} offset1:12")
    for i in range(4):
        a(f"v_mov_b32 v{56+i}, 0")
    for o in range(2):
        a(f"s_waitcnt lgkmcnt({8*(1-o)})")
        for k in range(8):
            a(f"v_add_f32 v{16+16*o+2*k}, v{16+16*o+2*k}, v{17+16*o+2*k}")
        for k in range(4):
            a(f"v_cvt_pk_bf16_f32 v{48+4*o+k}, v{16+16*o+4*k}, v{18+16*o+4*k}")
        a(f"buffer_store_dwordx4 {vr(48+4*o,4)}, v6, s[40:43], s66 offen offset:{1024*o}")
    stamp(a, 7)
    stamp_out(a, 0, 40, 3, 4)
    a("s_mov_b64 exec, -1")
    a("s_cmp_eq_u32 s53, 0")
    a("s_cbranch_scc1 L1_end")
    a("s_add_u32 s66, s65, 4096")
    a("s_mov_b64 exec, 3")
    a("buffer_store_dwordx4 v[56:59], v6, s[40:43], s66 offen")
```

```python
from common import *
NAME = "attn_conv_kernel"
BLOCK = 768
XB = 128 * 1024
LDS = XB + 8 * 2560
VG = 168
OPT = dict(noconv=0, unroll=4, rot=0)
for kv in os.environ.get('K2OPT', '').split(','):
    if kv: OPT[kv.split('=')[0]] = int(kv.split('=')[1])
IDX = 2; LN16 = 3; KA = 4; VA = 5; KB0 = 6; VB0 = 7
QR = [8, 12]; S = [16, 32]; CB = [48, 64]; O = [80, 96]; KFR = [112, 116]; VFR = [120, 128]; M = [136, 137]; T = 138

def gen():
    a = A()
    head(a, NAME)
    a("s_cmp_ge_u32 s2, 256")
    a("s_cbranch_scc1 L2_end")
    stamp(a, 0)
    a("s_load_dwordx2 s[4:5], s[0:1], 112")
    a("v_lshrrev_b32 v2, 6, v0")
    a("v_and_b32 v1, 63, v0")
    a("v_readfirstlane_b32 s3, v2")
    a("v_lshlrev_b32 v3, 4, v1")
    a("s_and_b32 s12, s2, 31")
    a("s_lshr_b32 s13, s2, 5")
    a("s_lshl_b32 s14, s12, 16")
    a("s_cmp_ge_u32 s3, 8")
    a("s_cbranch_scc1 L2_help")
    attn(a)
    a.label("L2_help")
    helper(a)
    a.label("L2_end")
    a("s_endpgm")
    return a

def rowmax(a, m, src, first):
    if first:
        a(f"v_max3_f32 v{m}, v{src}, v{src+1}, v{src+2}")
        rest = list(range(src + 3, src + 16))
    else:
        rest = list(range(src, src + 16))
    while len(rest) >= 2:
        a(f"v_max3_f32 v{m}, v{m}, v{rest[0]}, v{rest[1]}"); rest = rest[2:]
    if rest: a(f"v_max_f32 v{m}, v{m}, v{rest[0]}")

def qk(a, x, kf, c=None):
    a(f"v_mfma_f32_32x32x16_bf16 {vr(S[x],16)}, {vr(kf,4)}, {vr(QR[x],4)}, {vr(CB[x],16) if c is None else c}")
def pv(a, x, vf, hi):
    a(f"v_smfmac_f32_32x32x32_bf16 {vr(O[x],16)}, {vr(vf+4*hi,4)}, {vr(S[x]+8*hi,8)}, v{IDX}")

def attn(a):
    U = OPT["unroll"]
    a("s_and_b32 s15, s3, 3")
    a("s_lshr_b32 s16, s3, 2")
    a("s_lshl_b32 s17, s13, 2")
    a("s_add_u32 s17, s17, s15")
    a("s_lshl_b32 s17, s17, 1")
    a("s_lshl_b32 s18, s17, 10")
    a("s_add_u32 s18, s18, s14")
    a("s_waitcnt lgkmcnt(0)")
    srd(a, 8, 4, WS_USED)
    a(f"buffer_load_dwordx4 {vr(QR[0],4)}, v3, s[8:11], s18 offen")
    a(f"buffer_load_dwordx4 {vr(QR[1],4)}, v3, s[8:11], s18 offen offset:1024")
    a(f"v_mov_b32 v{IDX}, 0xdddddddd")
    a(f"v_and_b32 v{T}, 27, v1")
    a(f"v_cmp_eq_u32 vcc, 16, v{T}")
    a(f"v_mov_b32 v{T+1}, 0x3f803f80")
    a("s_lshl_b32 s19, s16, 15")
    a(f"v_cndmask_b32 v{T+1}, 0, v{T+1}, vcc")
    for b in range(2):
        for i in range(8):
            a(f"v_mov_b32 v{VFR[b]+i}, v{T+1}")
    a(f"v_add_u32 v{KB0}, s19, v3")
    a(f"v_and_b32 v{T}, 15, v1")
    a(f"v_lshlrev_b32 v{T}, 4, v{T}")
    a(f"v_lshrrev_b32 v{T+1}, 5, v1")
    a(f"v_lshl_add_u32 v{T}, v{T+1}, 8, v{T}")
    a("s_add_u32 s19, s19, 0x10000")
    a(f"v_add_u32 v{VB0}, s19, v{T}")
    a("s_mov_b32 s22, 0xffff")
    a("s_mov_b32 s23, 0xffff")
    a("s_mov_b32 s24, 0")
    a(f"s_mov_b32 s26, {8 // U - 1}")
    stamp(a, 1)
    a("s_barrier")
    stamp(a, 2)
    a(f"ds_read_b128 {vr(KFR[0],4)}, v{KB0}")
    a("s_waitcnt vmcnt(0) lgkmcnt(0)")
    qk(a, 0, KFR[0], "0"); qk(a, 1, KFR[0], "0")
    a.nop(11)
    rowmax(a, M[0], S[0], True)
    rowmax(a, M[1], S[1], True)
    a.label("L2_start")
    for x in range(2):
        a(f"v_mov_b32 v{T+x}, v{M[x]}")
    a(f"v_mov_b32 v{KA}, v{KB0}")
    a(f"v_mov_b32 v{VA}, v{VB0}")
    for x in range(2):
        a(f"v_permlane32_swap_b32 v{M[x]}, v{T+x}")
    a(f"ds_read_b128 {vr(KFR[0],4)}, v{KA}")
    a(f"ds_read_b128 {vr(KFR[1],4)}, v{KA} offset:1024")
    a("s_mov_b64 exec, s[22:23]")
    a(f"ds_read_b128 {vr(VFR[0],4)}, v{VA}")
    a(f"ds_read_b128 {vr(VFR[0]+4,4)}, v{VA} offset:512")
    a("s_mov_b64 exec, -1")
    for x in range(2):
        a(f"v_max_f32 v{M[x]}, v{M[x]}, v{T+x}")
    for x in range(2):
        for i in range(16):
            a(f"v_sub_f32 v{CB[x]+i}, 0, v{M[x]}")
    a("s_waitcnt lgkmcnt(3)")
    qk(a, 0, KFR[0])
    for x in range(2):
        for i in range(9):
            a(f"v_mov_b32 v{O[x]+i}, 0")
    for i in range(8):
        a(f"v_mov_b32 v{S[1]+8+i}, 0")
    a("s_mov_b32 s25, 0")
    stamp(a, 3)
    a(".p2align 6")
    a.label("L2_loop")
    body = A()
    for t in range(U):
        p = t & 1
        for x in range(2):
            y = x ^ 1
            E = lambda i: body(f"v_exp_f32 v{S[x]+i}, v{S[x]+i}")
            E(0); E(1)
            pv(body, y, VFR[p ^ 1] if x == 0 else VFR[p], 1)
            E(2); E(3); E(4); E(5); E(6)
            if x == 0:
                body("s_waitcnt lgkmcnt(0)")
                qk(body, 1, KFR[p])
                if t == U - 2:
                    body("s_cmp_eq_u32 s25, s26")
                    body("s_cbranch_scc1 L2_sync")
                    body.label("L2_synced")
                body(f"ds_read_b128 {vr(KFR[p],4)}, v{KA} offset:{(t+2)*1024}")
                body("s_mov_b64 exec, s[22:23]")
                body(f"ds_read_b128 {vr(VFR[p^1],4)}, v{VA} offset:{(t+1)*1024}")
                body(f"ds_read_b128 {vr(VFR[p^1]+4,4)}, v{VA} offset:{(t+1)*1024+512}")
                body("s_mov_b64 exec, -1")
                E(7); E(8); E(9); E(10); E(11)
                pv(body, x, VFR[p], 0)
                E(12); E(13); E(14); E(15)
            else:
                body.lines = body.lines[:-2]
                qk(body, 0, KFR[p ^ 1])
                E(5); E(6); E(7); E(8); E(9); E(10)
                pv(body, x, VFR[p], 0)
                if t == U - 1:
                    body(f"v_add_u32 v{KA}, {U*1024}, v{KA}")
                    body(f"v_add_u32 v{VA}, {U*1024}, v{VA}")
                    body("s_add_u32 s25, s25, 1")
                    body(f"s_cmp_lt_u32 s25, {32 // U}")
                E(11); E(12); E(13); E(14); E(15)
    for pr in check(body.lines + body.lines, "k2loop")[:4]: print(pr)
    a.lines += body.lines
    a("s_cbranch_scc1 L2_loop")
    stamp(a, 5)
    a("s_nop 1")
    pv(a, 1, VFR[(U - 1) & 1], 1)
    a("s_mul_i32 s18, s3, 2560")
    a(f"s_add_u32 s18, s18, {XB}")
    a("s_xor_b32 s19, s3, 4")
    a("s_mul_i32 s19, s19, 2560")
    a(f"s_add_u32 s19, s19, {XB}")
    a(f"v_add_u32 v{KA}, s18, v3")
    a(f"v_add_u32 v{VA}, s19, v3")
    a(f"v_lshrrev_b32 v{T}, 1, v3")
    a(f"v_add_u32 v{T+1}, s19, v{T}")
    a(f"v_add_u32 v{T}, s18, v{T}")
    a("s_add_u32 s17, s17, s16")
    a("s_lshl_b32 s18, s17, 15")
    a("s_lshl_b32 s19, s12, 10")
    a("s_add_u32 s18, s18, s19")
    a(f"s_add_u32 s18, s18, {OF}")
    a(f"v_max_f32 v{T+2}, v{O[0]+8}, v{O[1]+8}")
    a(f"v_add_f32 v{T+3}, v{O[0]+8}, v{O[1]+8}")
    a(f"v_cmp_nge_f32 vcc, {f32(2.0**40)}, v{T+3}")
    a("s_cmp_lg_u32 s24, 0")
    a("s_cbranch_scc1 L2_fin")
    a("s_nop 2")
    a("s_cbranch_vccnz L2_fallback")
    a.label("L2_fin")
    a("s_cmp_eq_u32 s16, 0")
    a("s_cbranch_scc1 L2_noswap")
    for i in range(9):
        a(f"v_swap_b32 v{O[0]+i}, v{O[1]+i}")
    a(f"v_swap_b32 v{M[0]}, v{M[1]}")
    a.label("L2_noswap")
    a(f"v_mov_b32 v{O[1]+9}, v{M[1]}")
    a(f"ds_write_b128 v{KA}, {vr(O[1],4)}")
    a(f"ds_write_b128 v{KA}, {vr(O[1]+4,4)} offset:1024")
    a(f"ds_write_b64 v{T}, {vr(O[1]+8,2)} offset:2048")
    a("s_waitcnt lgkmcnt(0)")
    a("s_barrier")
    stamp(a, 6)
    a(f"ds_read_b64 {vr(S[0]+8,2)}, v{T+1} offset:2048")
    a(f"ds_read_b128 {vr(S[0],4)}, v{VA}")
    a(f"ds_read_b128 {vr(S[0]+4,4)}, v{VA} offset:1024")
    a("s_waitcnt lgkmcnt(2)")
    a(f"v_max_f32 v{T}, v{M[0]}, v{S[0]+9}")
    a(f"v_sub_f32 v{T+1}, v{M[0]}, v{T}")
    a(f"v_sub_f32 v{T+2}, v{S[0]+9}, v{T}")
    a(f"v_exp_f32 v{T+1}, v{T+1}")
    a(f"v_exp_f32 v{T+2}, v{T+2}")
    a("s_nop 0")
    a(f"v_mul_f32 v{T}, v{O[0]+8}, v{T+1}")
    a(f"v_fmac_f32 v{T}, v{S[0]+8}, v{T+2}")
    a(f"v_rcp_f32 v{T}, v{T}")
    a("s_nop 0")
    a(f"v_mul_f32 v{T+1}, v{T+1}, v{T}")
    a(f"v_mul_f32 v{T+2}, v{T+2}, v{T}")
    a("s_waitcnt lgkmcnt(0)")
    for i in range(8):
        a(f"v_mul_f32 v{O[0]+i}, v{O[0]+i}, v{T+1}")
    for i in range(8):
        a(f"v_fmac_f32 v{O[0]+i}, v{S[0]+i}, v{T+2}")
    for i in range(4):
        a(f"v_cvt_pk_bf16_f32 v{S[1]+i}, v{O[0]+2*i}, v{O[0]+2*i+1}")
    a(f"buffer_store_dwordx4 {vr(S[1],4)}, v3, s[8:11], s18 offen")
    stamp_out(a, 1, 8, 3)
    a("s_endpgm")
    a.label("L2_sync")
    a("s_barrier")
    stamp(a, 4)
    a("s_branch L2_synced")
    a.label("L2_fallback")
    a("s_mov_b32 s24, 1")
    a("s_sub_u32 s17, s17, s16")
    a("s_mov_b32 s26, -1")
    a("s_mov_b32 s25, 0")
    a(f"v_mov_b32 v{KA}, v{KB0}")
    a(f"v_mov_b32 v{M[0]}, 0xff800000")
    a(f"v_mov_b32 v{M[1]}, 0xff800000")
    a("s_waitcnt lgkmcnt(0)")
    a.label("L2_fb_loop")
    a(f"ds_read_b128 {vr(KFR[0],4)}, v{KA}")
    a(f"v_add_u32 v{KA}, 0x400, v{KA}")
    a("s_waitcnt lgkmcnt(0)")
    qk(a, 0, KFR[0], "0"); qk(a, 1, KFR[0], "0")
    a.nop(12)
    rowmax(a, M[0], S[0], False)
    rowmax(a, M[1], S[1], False)
    a("s_add_u32 s25, s25, 1")
    a("s_cmp_lt_u32 s25, 32")
    a("s_cbranch_scc1 L2_fb_loop")
    a("s_branch L2_start")

def helper(a):
    a("s_sub_u32 s3, s3, 8")
    a("s_lshl_b32 s17, s3, 11")
    a("s_add_u32 s18, s14, s17")
    a(f"s_add_u32 s18, s18, {KF}")
    a("s_waitcnt lgkmcnt(0)")
    srd(a, 8, 4, WS_USED)
    a(f"s_and_b32 s21, s13, {OPT['rot']}")
    def dma(j):
        a(f"s_add_u32 s19, s21, {j}")
        a("s_and_b32 s19, s19, 7")
        a("s_lshl_b32 s19, s19, 13")
        a("s_add_u32 s19, s19, s18")
        a(f"s_add_u32 m0, s17, {j*8192}")
        a(f"s_add_u32 s20, s19, {VF-KF}")
        a("buffer_load_dwordx4 v3, s[8:11], s19 offen lds")
        a("buffer_load_dwordx4 v3, s[8:11], s19 offen offset:1024 lds")
        a(f"s_add_u32 m0, s17, {65536 + j*8192}")
        a("s_nop 0")
        a("buffer_load_dwordx4 v3, s[8:11], s20 offen lds")
        a("buffer_load_dwordx4 v3, s[8:11], s20 offen offset:1024 lds")
    dma(0); dma(4)
    a("s_waitcnt vmcnt(0)")
    stamp(a, 1)
    a("s_barrier")
    for j in (1, 5, 2, 6, 3, 7): dma(j)
    if OPT["noconv"]:
        a("s_waitcnt vmcnt(0)"); a("s_barrier"); a("s_endpgm")
    a("s_setprio 3")
    a("s_lshr_b32 s12, s3, 1")
    a("s_lshl_b32 s13, s2, 1")
    a("s_add_u32 s12, s12, s13")
    a(f"s_mul_i32 s13, s12, {KRS}")
    a(f"s_add_u32 s13, s13, {KR}")
    a("s_lshl_b32 s14, s12, 12")
    a(f"s_add_u32 s15, s14, {UT}")
    a(f"s_add_u32 s14, s14, {YT}")
    a("v_and_b32 v3, 15, v1")
    a("v_lshrrev_b32 v4, 4, v1")
    a("v_lshlrev_b32 v5, 4, v4")
    a("v_lshlrev_b32 v6, 1, v3")
    a("v_sub_u32 v6, v5, v6")
    a(f"v_add_u32 v6, {4062-3584}, v6")
    a("v_lshl_add_u32 v7, v3, 5, v5")
    a("v_subrev_u32 v7, 32, v7")
    a("v_lshlrev_b32 v10, 5, v3")
    a("v_lshl_add_u32 v10, v4, 3, v10")
    a("s_mov_b32 s28, 0x7fff0000")
    a("s_add_u32 s16, s4, s13")
    a("s_addc_u32 s17, s5, 0")
    a("s_mov_b32 s18, 4128")
    a("s_mov_b32 s19, 0x20000")
    a("s_add_u32 s20, s4, s15")
    a("s_addc_u32 s21, s5, 0")
    a("s_mov_b32 s22, 4096")
    a("s_mov_b32 s23, 0x20000")
    a("s_and_b32 s24, s3, 1")
    a("s_cmp_eq_u32 s24, 1")
    a("s_cbranch_scc1 L2_conv1")
    for part, hs in enumerate(([7, 6, 2], [5, 4, 3, 1, 0])):
        if part: a.label("L2_conv1")
        nf = max(hs) + 1
        ACC = 140
        FB = [12, 76]
        def loads(c0):
            fb = FB[c0 & 1]
            a("v_min_u32 v8, s28, v7")
            a("v_add_u32 v9, 512, v7")
            for i in range(nf):
                a(f"buffer_load_dwordx4 {vr(fb+4*i,4)}, v6, s[16:19], 0 offen offset:{512*(7-i)}")
                if i == 0: a(f"buffer_load_dwordx4 {vr(fb+32,4)}, v8, s[20:23], 0 offen")
                else: a(f"buffer_load_dwordx4 {vr(fb+32+4*i,4)}, v9, s[20:23], 0 offen offset:{512*(i-1)}")
            a("v_subrev_u32 v6, 64, v6")
            a("v_subrev_u32 v7, 64, v7")
        def mm(c0):
            fb = FB[c0 & 1]
            for c1 in range(nf):
                for k, h in enumerate(hs):
                    if c1 <= h:
                        a(f"v_mfma_f32_16x16x32_bf16 {vr(ACC+4*k,4)}, {vr(fb+4*c1,4)}, {vr(fb+32+4*(h-c1),4)}, {vr(ACC+4*k,4)}")
        loads(0)
        for i in range(4 * len(hs)):
            a(f"v_mov_b32 v{ACC+i}, 0")
        a(f"s_waitcnt vmcnt({2*nf})")
        stamp(a, 2)
        a("s_barrier")
        stamp(a, 3)
        a("s_mov_b32 s25, 0")
        a.label(f"L2_cl{part}")
        loads(1)
        a(f"s_waitcnt vmcnt({2*nf})")
        mm(0)
        a("s_cmp_eq_u32 s25, 3")
        a(f"s_cbranch_scc1 L2_cl{part}_last")
        loads(0)
        a(f"s_waitcnt vmcnt({2*nf})")
        mm(1)
        a("s_add_u32 s25, s25, 1")
        a(f"s_branch L2_cl{part}")
        a.label(f"L2_cl{part}_last")
        a("s_waitcnt vmcnt(0)")
        mm(1)
        a.nop(8)
        for k, h in enumerate(hs):
            a(f"v_cvt_pk_bf16_f32 v{12+2*k}, v{ACC+4*k}, v{ACC+4*k+1}")
            a(f"v_cvt_pk_bf16_f32 v{13+2*k}, v{ACC+4*k+2}, v{ACC+4*k+3}")
            a(f"buffer_store_dwordx2 {vr(12+2*k,2)}, v10, s[8:11], s14 offen offset:{512*h}")
        stamp_out(a, 1, 8, 3, 8)
        a("s_endpgm")
```

```python
from common import *
NAME = "oproj_kernel"
BLOCK = 256
LDS = 72 * 1024
VG = 200
def gen():
    a = A()
    head(a, NAME)
    a("s_cmp_ge_u32 s2, 256")
    a("s_cbranch_scc1 L3_end")
    stamp(a, 0)
    a("s_load_dwordx4 s[4:7], s[0:1], 16")
    a("s_load_dwordx4 s[8:11], s[0:1], 88")
    a("s_load_dwordx2 s[12:13], s[0:1], 112")
    a("v_lshrrev_b32 v2, 6, v0")
    a("v_and_b32 v1, 63, v0")
    a("v_readfirstlane_b32 s3, v2")
    a("s_and_b32 s14, s2, 7")
    a("s_lshl_b32 s14, s14, 2")
    a("s_bfe_u32 s15, s2, 0x20003")
    a("s_add_u32 s14, s14, s15")
    a("s_lshr_b32 s15, s2, 5")
    a("v_lshlrev_b32 v3, 4, v1")
    a("v_lshrrev_b32 v4, 2, v1")
    a("v_and_b32 v5, 3, v1")
    a("v_lshlrev_b32 v5, 4, v5")
    a("v_lshl_add_u32 v6, v4, 10, v5")
    a("v_lshl_add_u32 v7, v4, 12, v5")
    a("v_and_b32 v8, 31, v1")
    a("v_lshrrev_b32 v9, 5, v1")
    a("v_lshlrev_b32 v10, 4, v9")
    a("v_lshl_add_u32 v11, v8, 10, v10")
    a("v_lshl_add_u32 v12, v8, 11, v10")
    a("s_lshr_b32 s16, s3, 1")
    a("s_lshl_b32 s17, s14, 1")
    a("s_add_u32 s16, s16, s17")
    a("s_and_b32 s17, s3, 1")
    a("s_lshl_b32 s18, s15, 1")
    a("s_add_u32 s17, s17, s18")
    a("s_lshl_b32 s18, s17, 17")
    a("s_lshl_b32 s19, s16, 6")
    a("s_add_u32 s18, s18, s19")
    a(f"s_add_u32 s18, s18, {YT}")
    a("s_add_u32 s19, s18, 0x10000")
    a("s_lshl_b32 s20, s17, 6")
    a("s_lshl_b32 s21, s16, 15")
    a("s_add_u32 s21, s21, s20")
    a("s_lshl_b32 s22, s16, 16")
    a("s_add_u32 s22, s22, s20")
    a("s_add_u32 s22, s22, 1024")
    a("s_lshl_b32 s23, s3, 11")
    a("s_add_u32 s23, s23, 0x10000")
    a("s_lshl_b32 s24, s3, 14")
    a("s_lshl_b32 s25, s3, 17")
    a("s_lshl_b32 s26, s15, 7")
    a("s_add_u32 s25, s25, s26")
    a("s_lshl_b32 s26, s14, 16")
    a("s_lshl_b32 s27, s3, 13")
    a("s_add_u32 s26, s26, s27")
    a(f"s_add_u32 s26, s26, {OF}")
    a("s_add_u32 s27, s26, 0x8000")
    a("s_waitcnt lgkmcnt(0)")
    srd(a, 32, 4, 512 * 1024)
    srd(a, 36, 6, 2048 * 1024)
    srd(a, 40, 8, 1024)
    srd(a, 44, 10, 2048 * 2048)
    srd(a, 48, 12, WS_USED)
    stamp(a, 1)
    a("s_mov_b32 m0, s23")
    a("s_nop 0")
    a("buffer_load_dwordx4 v7, s[48:51], s18 offen lds")
    a("s_add_u32 m0, s23, 1024")
    a("s_nop 0")
    a("buffer_load_dwordx4 v7, s[48:51], s19 offen lds")
    U, D, Y = 16, 24, 32
    a(f"buffer_load_dwordx4 {vr(U,4)}, v11, s[36:39], s21 offen")
    a(f"buffer_load_dwordx4 {vr(U+4,4)}, v11, s[36:39], s21 offen offset:32")
    a(f"buffer_load_dwordx4 {vr(D,4)}, v10, s[40:43], s20 offen")
    a(f"buffer_load_dwordx4 {vr(D+4,4)}, v10, s[40:43], s20 offen offset:32")
    OFR = 64
    ACC = 128
    for i in range(8):
        for cb in range(2):
            a(f"s_add_u32 m0, s24, {(2*i+cb)*1024}")
            a(f"s_add_u32 s28, s25, {i*16384 + cb*64}")
            a("buffer_load_dwordx4 v6, s[32:35], s28 offen lds")
        if i == 4:
            a("s_add_u32 s26, s26, 4096")
            a("s_add_u32 s27, s27, 4096")
        for b in range(2):
            a(f"buffer_load_dwordx4 {vr(OFR+8*i+4*b,4)}, v3, s[48:51], s{26+b} offen offset:{(i&3)*1024}")
    a("v_bfe_u32 v4, v1, 2, 2")
    a("v_lshlrev_b32 v4, 6, v4")
    a("v_bfe_u32 v5, v1, 4, 1")
    a("v_lshl_add_u32 v4, v5, 5, v4")
    a("v_and_b32 v5, 3, v1")
    a("v_lshl_add_u32 v4, v5, 3, v4")
    a("v_lshl_add_u32 v13, v9, 9, v4")
    a("v_add_u32 v13, s23, v13")
    a("v_lshl_add_u32 v14, v9, 8, v4")
    a("v_add_u32 v14, s24, v14")
    for i in range(64):
        a(f"v_mov_b32 v{ACC+i}, 0")
    stamp(a, 2)
    a("s_waitcnt vmcnt(32)")
    stamp(a, 3)
    a(f"ds_read_b64_tr_b16 {vr(Y,2)}, v13")
    a(f"ds_read_b64_tr_b16 {vr(Y+2,2)}, v13 offset:256")
    a(f"ds_read_b64_tr_b16 {vr(Y+4,2)}, v13 offset:1024")
    a(f"ds_read_b64_tr_b16 {vr(Y+6,2)}, v13 offset:1280")
    T = 40
    for i in range(8):
        a(f"v_lshlrev_b32 v{T}, 16, v{U+i}")
        a(f"v_and_b32 v{T+1}, 0xffff0000, v{U+i}")
        a(f"v_lshlrev_b32 v{T+2}, 16, v{D+i}")
        a(f"v_and_b32 v{T+3}, 0xffff0000, v{D+i}")
        a(f"v_mul_f32 v{T}, v{T}, v{T+2}")
        a(f"v_mul_f32 v{T+1}, v{T+1}, v{T+3}")
        a(f"v_cvt_pk_bf16_f32 v{U+i}, v{T}, v{T+1}")
    a("s_waitcnt lgkmcnt(0)")
    for i in range(8):
        a(f"v_lshlrev_b32 v{T}, 16, v{U+i}")
        a(f"v_and_b32 v{T+1}, 0xffff0000, v{U+i}")
        a(f"v_lshlrev_b32 v{T+2}, 16, v{Y+i}")
        a(f"v_and_b32 v{T+3}, 0xffff0000, v{Y+i}")
        a(f"v_add_f32 v{T}, v{T}, v{T+2}")
        a(f"v_add_f32 v{T+1}, v{T+1}, v{T+3}")
        a(f"v_cvt_pk_bf16_f32 v{D+i}, v{T}, v{T+1}")
    a(f"buffer_store_dwordx4 {vr(D,4)}, v12, s[44:47], s22 offen")
    a(f"buffer_store_dwordx4 {vr(D+4,4)}, v12, s[44:47], s22 offen offset:32")
    WF = [44, 52]
    def reads(i):
        f = WF[i & 1]
        for cb in range(2):
            a(f"ds_read_b64_tr_b16 {vr(f+4*cb,2)}, v14 offset:{(2*i+cb)*1024}")
            a(f"ds_read_b64_tr_b16 {vr(f+4*cb+2,2)}, v14 offset:{(2*i+cb)*1024+512}")
    stamp(a, 4)
    a(f"s_waitcnt vmcnt({28+2})")
    reads(0)
    for i in range(8):
        if i < 7:
            a(f"s_waitcnt vmcnt({28+2-4*(i+1)})")
            reads(i + 1)
            a("s_waitcnt lgkmcnt(4)")
        else:
            a("s_waitcnt lgkmcnt(0)")
        f = WF[i & 1]
        for b in range(2):
            for cb in range(2):
                c = ACC + 16 * (2 * b + cb)
                a(f"v_mfma_f32_32x32x16_bf16 {vr(c,16)}, {vr(f+4*cb,4)}, {vr(OFR+8*i+4*b,4)}, {vr(c,16)}")
    stamp(a, 5)
    a("v_lshlrev_b32 v4, 8, v8")
    a("v_add_u32 v4, s24, v4")
    a("v_and_b32 v5, 7, v1")
    a("v_xor_b32 v5, v5, v9")
    for q in range(4):
        a(f"v_xor_b32 v6, {2*q}, v5")
        a(f"v_lshl_add_u32 v{16+q}, v6, 4, v4")
    a("v_lshrrev_b32 v4, 3, v1")
    a("v_and_b32 v5, 3, v1")
    a("v_lshlrev_b32 v5, 1, v5")
    a("v_xor_b32 v5, v5, v4")
    a("v_lshlrev_b32 v6, 8, v4")
    a("v_bfe_u32 v7, v1, 2, 1")
    a("v_lshl_add_u32 v6, v7, 7, v6")
    a("s_lshl_b32 s28, s3, 12")
    a("v_add_u32 v6, s28, v6")
    a("v_lshl_add_u32 v20, v5, 4, v6")
    a("v_xor_b32 v5, 1, v5")
    a("v_lshl_add_u32 v21, v5, 4, v6")
    a("v_and_b32 v5, 7, v1")
    a("v_lshlrev_b32 v5, 4, v5")
    a("v_lshl_add_u32 v22, v4, 11, v5")
    a("s_lshl_b32 s28, s14, 17")
    a("s_lshl_b32 s29, s3, 15")
    a("s_add_u32 s28, s28, s29")
    a("s_lshl_b32 s29, s15, 7")
    a("s_add_u32 s28, s28, s29")
    a("s_add_u32 s29, s28, 0x4000")
    for b in range(2):
        for cb in range(2):
            for q in range(4):
                a(f"ds_write_b128 v{16+q}, {vr(ACC+16*(2*b+cb)+4*q,4)} offset:{b*8192+cb*128}")
    a("s_waitcnt lgkmcnt(0)")
    a("s_barrier")
    stamp(a, 6)
    R = 64
    for e in range(2):
        for p in range(4):
            for hs in range(2):
                a(f"ds_read_b128 {vr(R+32*e+8*p+4*hs,4)}, v{20+hs} offset:{p*16384+e*2048}")
    for e in range(2):
        a(f"s_waitcnt lgkmcnt({8*(1-e)})")
        B = R + 32 * e
        for k in range(8):
            a(f"v_add_f32 v{B+k}, v{B+k}, v{B+8+k}")
            a(f"v_add_f32 v{B+16+k}, v{B+16+k}, v{B+24+k}")
        for k in range(8):
            a(f"v_add_f32 v{B+k}, v{B+k}, v{B+16+k}")
        for k in range(4):
            a(f"v_cvt_pk_bf16_f32 v{24+4*e+k}, v{B+2*k}, v{B+2*k+1}")
        a(f"buffer_store_dwordx4 {vr(24+4*e,4)}, v22, s[44:47], s{28+e} offen")
    stamp_out(a, 2, 48, 3)
    a.label("L3_end")
    a("s_endpgm")
    return a
if __name__ == "__main__":
    a = gen()
    for p in check(a.lines, "k3"): print(p)
```

```python
from asm import A, vr, sr, check
import struct
MB = 1 << 20
QF, KF, VF, OF, UT, YT, KR = 0, 2*MB, 4*MB, 6*MB, 8*MB, 10*MB, 12*MB
KRS = 4160
WS_USED = 16 * MB
STAMPS = 15 * MB
import os
DIAG = bool(int(os.environ.get('DIAG', '0')))
def f32(x):
    return "0x%08x" % struct.unpack("<I", struct.pack("<f", x))[0]
LOG2E = 1.4426950408889634
def srd(a, d, base, nbytes):
    a(f"s_mov_b32 s{d}, s{base}")
    a(f"s_mov_b32 s{d+1}, s{base+1}")
    a(f"s_mov_b32 s{d+2}, {nbytes}")
    a(f"s_mov_b32 s{d+3}, 0x20000")
def kd(name, vgpr, sgpr=96):
    acc = (vgpr + 3) // 4 * 4
    return f""".amdhsa_kernel {name}
  .amdhsa_next_free_vgpr {vgpr}
  .amdhsa_next_free_sgpr {sgpr}
  .amdhsa_accum_offset {acc}
  .amdhsa_group_segment_fixed_size 0
  .amdhsa_kernarg_size 120
  .amdhsa_user_sgpr_count 2
  .amdhsa_user_sgpr_kernarg_segment_ptr 1
  .amdhsa_system_sgpr_workgroup_id_x 1
.end_amdhsa_kernel
"""
def head(a, name):
    a(f".globl {name}")
    a(".p2align 8")
    a(f".type {name},@function")
    a.label(name)

def stamp(a, i):
    if not DIAG: return
    a(f"s_memtime s[{72+2*i}:{73+2*i}]")
    if i == 0: a("s_memrealtime s[90:91]")
def stamp_out(a, kidx, srd_base, wave_sgpr, wave_add=0, n=8):
    if not DIAG: return
    a("s_memtime s[88:89]")
    a("s_memrealtime s[92:93]")
    a("s_mov_b64 exec, -1")
    a("s_lshl_b32 s94, s2, 4")
    a(f"s_add_u32 s94, s94, s{wave_sgpr}")
    a(f"s_add_u32 s94, s94, {kidx*4096 + wave_add}")
    a("s_lshl_b32 s94, s94, 6")
    a(f"s_add_u32 s94, s94, {STAMPS}")
    a("s_waitcnt lgkmcnt(0)")
    a("v_mov_b32 v0, 0")
    for i in range(11):
        a(f"v_writelane_b32 v0, s{72+2*i}, {i}")
    a("v_mbcnt_lo_u32_b32 v1, -1, 0")
    a("v_mbcnt_hi_u32_b32 v1, -1, v1")
    a("v_lshlrev_b32 v1, 2, v1")
    a("s_mov_b64 exec, 0xffff")
    a(f"buffer_store_dword v0, v1, s[{srd_base}:{srd_base+3}], s94 offen")
    dbg = os.environ.get("DBGWG")
    if dbg is not None:
        import random
        l = "Ldbg%d" % random.randrange(1 << 30)
        a(f"s_cmp_lg_u32 s2, {dbg}")
        a(f"s_cbranch_scc1 {l}")
        a(f"s_and_b32 s94, s{wave_sgpr}, 7")
        a("s_cmp_lg_u32 s94, 0")
        a(f"s_cbranch_scc1 {l}")
        a(f"s_lshl_b32 s94, s{wave_sgpr}, 2")
        a("s_sub_u32 s94, s94, 4")
        a("v_subrev_u32 v0, s72, v0")
        a("v_add_u32 v1, s94, v1")
        a("s_mov_b64 exec, 0x1fe")
        a("global_store_dword v1, v0, s[30:31]")
        a.label(l)
```
